```python
import torch

def _softmax(x, axis=-1):
    return torch.softmax(x, dim=axis)

def _gelu(x):
    return torch.nn.functional.gelu(x, approximate='tanh')

def _silu(x):
    return torch.nn.functional.silu(x)

def _sigmoid(x):
    return torch.sigmoid(x)

def _layernorm(x, axis=-1, eps=1e-05):
    m = x.mean(dim=axis, keepdim=True)
    v = x.var(dim=axis, keepdim=True, unbiased=False)
    return (x - m) / torch.sqrt(v + eps)

def _scatter_add(tgt, idx, src, axis=0):
    return tgt.clone().index_add_(axis, idx, src)

def _segment_sum(src, seg, n):
    out = torch.zeros((n,) + src.shape[1:], dtype=src.dtype)
    return out.index_add_(0, seg, src)

def _pad(x, pw):
    flat = tuple((v for pair in reversed(pw) for v in pair))
    return torch.nn.functional.pad(x, flat)
kernel_name = 'sequential_preLN__memory_aug_recurrent_mem_tr__mixer_token_mlp__prompt'

def setup_inputs():

    _w = lambda a: (lambda t: t.to(torch.bfloat16) if t.is_floating_point() else t)(torch.as_tensor(a))

    def _A_setup():
        B, S, Dm = (1, 2048, 448)
        H, Dh = (16, 256)
        M, seg = (8, 32)
        seg = min(seg, S)
        S = S // seg * seg
        return {'x': _w((lambda *s: torch.randn(*s, dtype=torch.bfloat16) * 0.05)(B, S, Dm)), 'mem0': _w((lambda *s: torch.randn(*s, dtype=torch.bfloat16) * 0.2)(B, M, Dm)), 'Wq': _w((lambda *s: torch.randn(*s, dtype=torch.bfloat16) * 1.6)(Dm, H, Dh) * Dm ** (-0.5)), 'Wk': _w((lambda *s: torch.randn(*s, dtype=torch.bfloat16) * 1.6)(Dm, H, Dh) * Dm ** (-0.5)), 'Wv': _w((lambda *s: torch.randn(*s, dtype=torch.bfloat16) * 0.2)(Dm, H, Dh) * Dm ** (-0.5)), 'Wo': _w((lambda *s: torch.randn(*s, dtype=torch.bfloat16) * 0.2)(H, Dh, Dm) * (H * Dh) ** (-0.5)), 'seg_len': seg}
    _A_in = _A_setup()

    def _B_setup():
        B, S, D, F = (1, 2048, 448, 1792)
        return {'x': _w((lambda *s: torch.randn(*s, dtype=torch.bfloat16) * 0.05)(B, S, D)), 'w1': _w((lambda *s: torch.randn(*s, dtype=torch.bfloat16) * 0.4)(S, F) * S ** (-0.5)), 'b1': _w((lambda *s: torch.randn(*s, dtype=torch.bfloat16) * 3.2)(F) * 0.02), 'w2': _w((lambda *s: torch.randn(*s, dtype=torch.bfloat16) * 0.4)(F, S) * F ** (-0.5)), 'b2': _w((lambda *s: torch.randn(*s, dtype=torch.bfloat16) * 1.6)(S) * 0.02)}
    _B_in = _B_setup()
    return {'A_x': _A_in['x'], 'A_mem0': _A_in['mem0'], 'A_Wq': _A_in['Wq'], 'A_Wk': _A_in['Wk'], 'A_Wv': _A_in['Wv'], 'A_Wo': _A_in['Wo'], 'A_seg_len': _A_in['seg_len'], 'B_x': _B_in['x'], 'B_w1': _B_in['w1'], 'B_b1': _B_in['b1'], 'B_w2': _B_in['w2'], 'B_b2': _B_in['b2']}

def reference(A_x, A_mem0, A_Wq, A_Wk, A_Wv, A_Wo, A_seg_len, B_x, B_w1, B_b1, B_w2, B_b2):

    def _A_ref(x, mem0, Wq, Wk, Wv, Wo, seg_len):
        B, S, Dm = x.shape
        H, Dh = (Wq.shape[1], Wq.shape[2])
        M = mem0.shape[1]
        scale = Dh ** (-0.5)
        n_seg = S // seg_len
        L = M + seg_len
        idx = torch.arange(L)
        mask = (idx[:, None] < M) | (idx[:, None] >= idx[None, :])
        mem = mem0
        outs = []
        for s in range(n_seg):
            xs = x[:, s * seg_len:(s + 1) * seg_len, :].clone()
            h = torch.concatenate([mem, xs], axis=1)
            q = torch.einsum('btd,dhe->bhte', h, Wq)
            k = torch.einsum('btd,dhe->bhte', h, Wk)
            v = torch.einsum('btd,dhe->bhte', h, Wv)
            scores = torch.einsum('bhqe,bhke->bhqk', q, k) * scale
            scores = torch.where(mask[None, None], scores, -1000000000.0)
            p = _softmax(scores, axis=-1)
            o = torch.einsum('bhqk,bhke->bhqe', p, v)
            o = torch.einsum('bhte,hed->btd', o, Wo)
            mem = o[:, :M, :].clone()
            outs.append(o[:, M:, :])
        return torch.concatenate(outs, axis=1)

    def _B_ref(x, w1, b1, w2, b2):
        B, S, D = x.shape
        h = _layernorm(x, axis=-1)
        u = torch.einsum('bsd,sf->bdf', h, w1) + b1
        u = _gelu(u)
        y = torch.einsum('bdf,fs->bds', u, w2) + b2
        return (lambda x, *d: x.permute(*d))(y, 0, 2, 1)
    x = A_x
    h = x + _A_ref(_layernorm(x, axis=-1), A_mem0, A_Wq, A_Wk, A_Wv, A_Wo, A_seg_len)
    h2 = h + _B_ref(_layernorm(h, axis=-1), B_w1, B_b1, B_w2, B_b2)
    return h2
```

```python
class Asm:
    def __init__(self):
        self.L = []
        self.lgkm = []
        self.vm = []
        self.uid = 0
    def __call__(self, s):
        for line in s.strip("\n").split("\n"):
            self.L.append("  " + line.strip())
    def raw(self, s): self.L.append(s)
    def label(self, n): self.L.append(n + ":")
    def newlabel(self, p):
        self.uid += 1
        return f"L_{p}_{self.uid}"
    def text(self): return "\n".join(self.L) + "\n"
    def ds(self, s, tag=None):
        self(s); self.lgkm.append(tag)
    def vmem(self, s, tag=None):
        self(s); self.vm.append(tag)
    def wait_ds(self, tag):
        idx = max(i for i, t in enumerate(self.lgkm) if t == tag)
        n = len(self.lgkm) - 1 - idx
        assert n <= 15, f"lgkmcnt {n} too large"
        self(f"s_waitcnt lgkmcnt({n})")
        self.lgkm = self.lgkm[idx + 1:]
    def wait_ds_all(self):
        self("s_waitcnt lgkmcnt(0)"); self.lgkm = []
    def wait_vm(self, tag):
        idx = max(i for i, t in enumerate(self.vm) if t == tag)
        n = len(self.vm) - 1 - idx
        assert n <= 63
        self(f"s_waitcnt vmcnt({n})")
        self.vm = self.vm[idx + 1:]
    def wait_vm_all(self):
        self("s_waitcnt vmcnt(0)"); self.vm = []
def vr(base, n):
    p = "v"
    if base >= 256:
        p = "a"; base -= 256
        assert base + n <= 256
    else:
        assert base + n <= 256, (base, n)
    return f"{p}{base}" if n == 1 else f"{p}[{base}:{base + n - 1}]"
def sr(base, n=2):
    return f"s{base}" if n == 1 else f"s[{base}:{base + n - 1}]"
def kernel_begin(name):
    return f".globl {name}\n.p2align 8\n.type {name},@function\n{name}:\n"
def kernel_desc(name, vgpr=512, acc=256, sgpr=102):
    return f""".p2align 6
.amdhsa_kernel {name}
  .amdhsa_next_free_vgpr {vgpr}
  .amdhsa_next_free_sgpr {sgpr}
  .amdhsa_accum_offset {acc}
  .amdhsa_group_segment_fixed_size 0
  .amdhsa_kernarg_size 120
  .amdhsa_user_sgpr_count 2
  .amdhsa_user_sgpr_kernarg_segment_ptr 1
  .amdhsa_system_sgpr_workgroup_id_x 1
  .amdhsa_float_denorm_mode_32 3
  .amdhsa_float_denorm_mode_16_64 3
.end_amdhsa_kernel
"""

def rt_begin(a):
    a("s_memrealtime s[96:97]")
def rt_end(a, S_WS, prof_off, slot_sreg, tmp=90):
    l = a.newlabel("rt")
    a(f"s_memrealtime s[98:99]"); a("s_waitcnt lgkmcnt(0)")
    a("v_cmp_eq_u32 vcc, 0, v0"); a(f"s_and_saveexec_b64 s[{tmp}:{tmp+1}], vcc"); a(f"s_cbranch_execz {l}")
    a(f"s_lshl_b32 s{tmp+2}, s{slot_sreg}, 4"); a(f"s_add_u32 s{tmp+2}, s{tmp+2}, {prof_off}"); a(f"s_add_u32 s{tmp+2}, s{S_WS}, s{tmp+2}"); a(f"s_addc_u32 s{tmp+3}, s{S_WS+1}, 0")
    a("v_mov_b32 v2, s96"); a("v_mov_b32 v3, s97"); a("v_mov_b32 v4, s98"); a("v_mov_b32 v5, s99"); a("v_mov_b32 v1, 0")
    a(f"global_store_dwordx4 v1, v[2:5], s[{tmp+2}:{tmp+3}]"); a("s_waitcnt vmcnt(0)")
    a.label(l)
```

```python
import os
from asmlib import *
from layout import *
S_WS, S_DBG, S_W, S_ROLE, S_STEP, S_CNT = 4, 6, 8, 9, 10, 11
S_MEM, S_T0, S_T1, S_T2, S_T3 = 12, 14, 16, 18, 20
S_PX, S_PM, S_XN, S_OUT = 22, 24, 26, 28
S_VX = 30
S_LAST, S_TM = 39, 40
S_CG = 43
S_ACC = 44
S_MX = 60
S_GAM = 65
S_XQ = 66
S_EX = 62
NSTEP = 63
POLL_LIMIT = 1 << 18
OPT = dict(d2=int(os.environ.get("D2", 0)), gap=int(os.environ.get("GAP", 2)), presleepA=int(os.environ.get("PSA", 0)), presleepB=int(os.environ.get("PSB", 0)), presleepP=int(os.environ.get("PSP", 0)), psa01=int(os.environ.get("PSA01", 0)), psa23=int(os.environ.get("PSA23", 0)), xs=int(os.environ.get("XS", 4)), vs=int(os.environ.get("VS", 4)), pfd=int(os.environ.get("PFD", 2)), fine=dict(A=int(os.environ.get("FA", 0)), B=int(os.environ.get("FB", 0)), Bp=int(os.environ.get("FP", 0))))
def add64(a, dst, src, imm):
    a(f"s_add_u32 s{dst}, s{src}, {imm}"); a(f"s_addc_u32 s{dst+1}, s{src+1}, 0")
def add64s(a, dst, src, sreg):
    a(f"s_add_u32 s{dst}, s{src}, s{sreg}"); a(f"s_addc_u32 s{dst+1}, s{src+1}, 0")
class Prof:
    def __init__(self, on): self.on = on
    def init(self, a):
        if not self.on: return
        for k in range(16): a(f"s_mov_b32 s{S_ACC+k}, 0")
        a(f"s_memrealtime s[70:71]"); a(f"s_memtime s[72:73]")
        a(f"s_memtime s[{S_TM}:{S_TM+1}]"); a("s_waitcnt lgkmcnt(0)"); a(f"s_mov_b32 s{S_LAST}, s{S_TM}")
    def stamp(self, a, k):
        if not self.on or k not in self.on: return False
        a(f"s_memtime s[{S_TM}:{S_TM+1}]"); a("s_waitcnt lgkmcnt(0)")
        a(f"s_sub_u32 s{S_TM+2}, s{S_TM}, s{S_LAST}")
        a(f"s_cmp_ge_u32 s{S_STEP}, 8"); a(f"s_cselect_b32 s{S_TM+2}, s{S_TM+2}, 0")
        a(f"s_add_u32 s{S_ACC+k}, s{S_ACC+k}, s{S_TM+2}")
        a(f"s_mov_b32 s{S_LAST}, s{S_TM}")
        return True
    def dump(self, a):
        if not self.on: return
        a(f"s_memrealtime s[74:75]"); a(f"s_memtime s[76:77]"); a("s_waitcnt lgkmcnt(0)")
        a(f"s_sub_u32 s{S_ACC+14}, s74, s70"); a(f"s_sub_u32 s{S_ACC+15}, s76, s72")
        a(f"s_lshl_b32 s{S_T0}, s{S_ROLE}, 2"); a(f"s_add_u32 s{S_T0}, s{S_T0}, s{S_W}"); a(f"s_lshl_b32 s{S_T0}, s{S_T0}, 6")
        add64(a, S_T1, S_WS, ws.PROF); add64s(a, S_T1, S_T1, S_T0)
        a("v_mov_b32 v1, 0")
        for k in range(16):
            a(f"v_mov_b32 v2, s{S_ACC+k}"); a(f"global_store_dword v1, v2, s[{S_T1}:{S_T1+1}] offset:{4*k}")
        a("s_waitcnt vmcnt(0)")
def maxchk(a, t, regs):
    regs = list(regs)
    a(f"v_max3_u32 v{t}, v{regs[0]}, v{regs[1]}, v{regs[2]}"); regs = regs[3:]
    while len(regs) >= 2:
        a(f"v_max3_u32 v{t}, v{t}, v{regs[0]}, v{regs[1]}"); regs = regs[2:]
    if regs: a(f"v_max_u32 v{t}, v{t}, v{regs[0]}")
    a(f"v_cmp_eq_u32 vcc, -1, v{t}")
def poll(a, name, loadsA, loadsB, regsA, regsB, t, abort, onA, onB, presleep=0):
    lpa, lga, lgb, lout = a.newlabel(name + "_pa"), a.newlabel(name + "_ga"), a.newlabel(name + "_gb"), a.newlabel(name + "_out")
    n = None
    a(f"s_mov_b32 s{S_CNT}, 0")
    if presleep: a(f"s_sleep {presleep}")
    fd = OPT["fine"].get(name, 0)
    while fd > 0:
        k = min(fd // 4, 16)
        if k == 0: break
        a(f"s_nop {k-1}"); fd -= 4 * k
    if not OPT["d2"] or loadsB is None:
        a.label(lpa)
        loadsA(); a("s_waitcnt vmcnt(0)")
        maxchk(a, t, regsA); a(f"s_cbranch_vccz {lga}")
        a(f"s_add_u32 s{S_CNT}, s{S_CNT}, 1"); a(f"s_cmp_gt_u32 s{S_CNT}, {POLL_LIMIT}"); a(f"s_cbranch_scc1 {abort}"); a(f"s_branch {lpa}")
        a.label(lga); onA()
        return
    nA = loadsA(count=True)
    loadsA()
    if OPT["gap"]: a(f"s_sleep {OPT['gap']}")
    a.label(lpa)
    loadsB(); a(f"s_waitcnt vmcnt({nA})")
    maxchk(a, t, regsA); a(f"s_cbranch_vccz {lga}")
    loadsA(); a(f"s_waitcnt vmcnt({nA})")
    maxchk(a, t, regsB); a(f"s_cbranch_vccz {lgb}")
    a(f"s_add_u32 s{S_CNT}, s{S_CNT}, 1"); a(f"s_cmp_gt_u32 s{S_CNT}, {POLL_LIMIT}"); a(f"s_cbranch_scc1 {abort}"); a(f"s_branch {lpa}")
    a.label(lga); onA(); a(f"s_branch {lout}")
    a.label(lgb); onB()
    a.label(lout)
def gather_mem(a, vG0, vG1, GA, GB, vT, name, abort, prof, k, presleep):
    def mk(G):
        def f(count=False):
            if count: return 2
            a(f"global_load_dwordx4 {vr(G,4)}, v{vG0}, s[{S_MEM}:{S_MEM+1}] sc1"); a(f"global_load_dwordx4 {vr(G+4,4)}, v{vG1}, s[{S_MEM}:{S_MEM+1}] sc1")
        return f
    def on(G):
        def f():
            prof.stamp(a, k)
            a(f"ds_write_b128 v{vG0}, {vr(G,4)}"); a(f"ds_write_b128 v{vG1}, {vr(G+4,4)}")
        return f
    poll(a, name, mk(GA), mk(GB), range(GA, GA + 8), range(GB, GB + 8), vT, abort, on(GA), on(GB), presleep)
    a("s_waitcnt lgkmcnt(0)"); a("s_barrier")
def lane_consts(a, vL16, vG0, vG1, vIdx, vt):
    a(f"v_and_b32 v{vt}, 63, v0"); a(f"v_lshlrev_b32 v{vL16}, 4, v{vt}")
    a(f"s_lshl_b32 s{S_T0}, s{S_W}, 10"); a(f"v_add_u32 v{vG0}, s{S_T0}, v{vL16}")
    a(f"s_add_u32 s{S_T0}, s{S_W}, 4"); a(f"s_min_u32 s{S_T0}, s{S_T0}, 6"); a(f"s_lshl_b32 s{S_T0}, s{S_T0}, 10"); a(f"v_add_u32 v{vG1}, s{S_T0}, v{vL16}")
    a(f"v_and_b32 v{vt}, 8, v0"); a(f"v_cmp_eq_u32 vcc, 0, v{vt}"); a(f"v_mov_b32 v{vIdx}, 0xeeeeeeee"); a(f"v_mov_b32 v{vt}, 0x44444444"); a("s_nop 1")
    a(f"v_cndmask_b32 v{vIdx}, v{vIdx}, v{vt}, vcc")
def smf(d, A, B, idx): return f"v_smfmac_f32_16x16x64_bf16 {vr(d,4)}, {vr(A,4)}, {vr(B,8)}, v{idx}"
def load_frags(a, regs, sbase, vL16):
    for f, r in enumerate(regs):
        o = (f % 2) * 2048
        a(f"global_load_dwordx4 {vr(r,4)}, v{vL16}, s[{sbase}:{sbase+1}] offset:{o}")
        a(f"global_load_dwordx4 {vr(r+4,4)}, v{vL16}, s[{sbase}:{sbase+1}] offset:{o+1024}")
        if f % 2 == 1: add64(a, sbase, sbase, 4096)
DPPM = "row_mask:0xf bank_mask:0xf"
A_XN = 65536
SCW = 1664
A_TT, A_SC, A_NEG = 8192, 28672, 36864
def gen_A(a, prof, abort, done, q=False):
    MA, XN, MK, PK, D, TB, SC = 4, 32, 64, 72, 80, 92, 100
    vPM, vPX, vIdx, vL16, vG0, vG1, vTTw, vTTr, vMK, vSC0, vSMx, vSMm, vSC1 = 76, 77, 112, 113, 114, 115, 116, 117, 118, 119, 2, 3, 1
    W = [256 + 8 * f if f < 32 else 120 + 8 * (f - 32) for f in range(49)]
    t, t2, t3 = 78, 79, 88
    vBI, vBP = 90, 78
    NS = 64 if q else NSTEP
    lane_consts(a, vL16, vG0, vG1, vIdx, t)
    a(f"s_mul_i32 s{S_T0}, s{S_ROLE}, {HEADW}"); a(f"s_mul_i32 s{S_T0+1}, s{S_W}, {7*TILE}"); a(f"s_add_u32 s{S_T0}, s{S_T0}, s{S_T0+1}")
    add64(a, S_T1, S_WS, ws.WA); add64s(a, S_T1, S_T1, S_T0)
    load_frags(a, W, S_T1, vL16)
    a(f"v_and_b32 v{t}, 15, v0"); a(f"v_bfe_u32 v{t2}, v0, 4, 2")
    a(f"s_mul_i32 s{S_T0}, s{S_W}, 5120"); a(f"s_add_u32 s{S_T0}, s{S_T0}, {A_TT}")
    a(f"v_mul_u32_u24 v{vTTw}, 40, v{t}"); a(f"v_lshl_add_u32 v{vTTw}, v{t2}, 3, v{vTTw}"); a(f"v_add_u32 v{vTTw}, s{S_T0}, v{vTTw}")
    a(f"v_bfe_u32 v{t3}, v0, 2, 1"); a(f"v_bfe_u32 v{vTTr}, v0, 3, 1"); a(f"v_lshl_add_u32 v{t3}, v{vTTr}, 2, v{t3}")
    a(f"v_lshl_add_u32 v{t3}, v{t2}, 3, v{t3}"); a(f"v_mul_u32_u24 v{t3}, 40, v{t3}")
    a(f"v_and_b32 v{vTTr}, 3, v0"); a(f"v_lshl_add_u32 v{vTTr}, v{vTTr}, 3, v{t3}"); a(f"v_add_u32 v{vTTr}, s{S_T0}, v{vTTr}")
    a(f"s_mul_i32 s{S_T0}, s{S_W}, 112"); a(f"v_lshl_add_u32 v{t3}, v{t2}, 3, s{S_T0}")
    a(f"v_lshrrev_b32 v{vMK}, 6, v{t3}"); a(f"v_lshlrev_b32 v{vMK}, 10, v{vMK}")
    a(f"v_bfe_u32 v{vSC0}, v{t3}, 4, 2"); a(f"v_lshl_add_u32 v{vMK}, v{vSC0}, 8, v{vMK}")
    a(f"v_bfe_u32 v{vSC0}, v{t3}, 3, 1"); a(f"v_lshl_add_u32 v{vMK}, v{vSC0}, 3, v{vMK}")
    a(f"v_and_b32 v{vSC0}, 7, v0"); a(f"v_lshl_add_u32 v{vMK}, v{vSC0}, 4, v{vMK}")
    a(f"s_mul_i32 s{S_T0}, s{S_W}, {SCW}"); a(f"s_add_u32 s{S_T0}, s{S_T0}, {A_SC}")
    a(f"v_mul_u32_u24 v{vSC0}, 288, v{t2}"); a(f"v_lshl_add_u32 v{vSC0}, v{t}, 4, v{vSC0}"); a(f"v_add_u32 v{vSC0}, s{S_T0}, v{vSC0}")
    a(f"v_lshlrev_b32 v{vSC1}, 7, v{t2}"); a(f"v_lshl_add_u32 v{vSC1}, v{t}, 3, v{vSC1}"); a(f"v_add_u32 v{vSC1}, s{S_T0}, v{vSC1}"); a(f"v_add_u32 v{vSC1}, 1152, v{vSC1}")
    a(f"s_and_b32 s{S_T0}, s{S_W}, 1"); a(f"s_lshl_b32 s{S_T0}, s{S_T0}, 2"); a(f"v_add_u32 v{t}, s{S_T0}, v{t2}")
    a(f"v_and_b32 v{t2}, 15, v0")
    a(f"v_lshrrev_b32 v{t3}, 2, v{t2}"); a(f"v_mul_u32_u24 v{vSMx}, 288, v{t3}")
    if q:
        a(f"v_lshlrev_b32 v{vBI}, 2, v{t3}"); a(f"v_bfe_u32 v{vBI+1}, v{t2}, 1, 1"); a(f"v_lshl_add_u32 v{vBI}, v{vBI+1}, 4, v{vBI}")
        a(f"v_and_b32 v{vBI+1}, 1, v{t2}"); a(f"v_lshl_add_u32 v{vBI}, v{vBI+1}, 1, v{vBI}")
        a(f"s_lshl_b32 s{S_T0}, s{S_GAM}, 3"); a(f"v_add_u32 v{t3}, s{S_T0}, v{t}")
        a(f"v_add_u32 v{vBI+1}, 1, v{vBI}")
        a(f"v_cmp_gt_u32 vcc, v{vBI}, v{t3}"); a(f"v_mov_b32 v{vBI}, 0"); a(f"v_mov_b32 v89, 0xf149f2ca"); a("s_nop 0"); a(f"v_cndmask_b32 v{vBI}, v{vBI}, v89, vcc")
        a(f"v_cmp_gt_u32 vcc, v{vBI+1}, v{t3}"); a(f"v_mov_b32 v{vBI+1}, 0"); a("s_nop 1"); a(f"v_cndmask_b32 v{vBI+1}, v{vBI+1}, v89, vcc")
    a(f"v_lshl_add_u32 v{vSMx}, v{t}, 4, v{vSMx}"); a(f"v_and_b32 v{t3}, 1, v{t2}"); a(f"v_lshl_add_u32 v{vSMx}, v{t3}, 7, v{vSMx}")
    a(f"v_bfe_u32 v{t3}, v{t2}, 1, 1"); a(f"v_lshl_add_u32 v{vSMx}, v{t3}, 3, v{vSMx}"); a(f"v_add_u32 v{vSMx}, {A_SC}, v{vSMx}")
    a(f"v_lshrrev_b32 v{t3}, 1, v{t2}"); a(f"v_lshlrev_b32 v{vSMm}, 7, v{t3}"); a(f"v_lshl_add_u32 v{vSMm}, v{t}, 3, v{vSMm}")
    a(f"v_and_b32 v{t3}, 1, v{t2}"); a(f"v_lshl_add_u32 v{vSMm}, v{t3}, 6, v{vSMm}"); a(f"v_add_u32 v{vSMm}, {A_SC+1152}, v{vSMm}")
    a(f"v_mov_b32 v{t3}, {A_NEG}"); a(f"v_cmp_gt_u32 vcc, 4, v{t2}"); a("s_nop 1"); a(f"v_cndmask_b32 v{vSMm}, v{t3}, v{vSMm}, vcc")
    a(f"v_lshrrev_b32 v{t3}, 3, v{t2}"); a(f"v_lshlrev_b32 v{vPX}, 8, v{t3}"); a(f"v_and_b32 v{t3}, 1, v{t2}"); a(f"v_lshl_add_u32 v{vPX}, v{t3}, 7, v{vPX}")
    a(f"v_lshl_add_u32 v{vPX}, v{t}, 4, v{vPX}"); a(f"v_bfe_u32 v{t3}, v{t2}, 1, 2"); a(f"v_lshl_add_u32 v{vPX}, v{t3}, 2, v{vPX}")
    a(f"v_lshlrev_b32 v{vPM}, 2, v{t2}"); a(f"v_lshl_add_u32 v{vPM}, v{t}, 4, v{vPM}")
    a(f"v_cmp_gt_u32 s[{S_EX}:{S_EX+1}], 4, v{t2}")
    a(f"v_lshlrev_b32 v{t}, 4, v0"); a(f"v_add_u32 v{t}, 7168, v{t}")
    for k in range(4): a(f"v_mov_b32 v{80+k}, 0")
    for k in range(6): a(f"ds_write_b128 v{t}, v[80:83] offset:{k*4096}")
    a(f"v_mov_b32 v84, 0xf149f2ca"); a(f"v_mov_b32 v85, v84"); a(f"v_mov_b32 v{t}, {A_NEG}")
    for w in range(4): a(f"ds_write_b64 v{t}, v[84:85] offset:{w*SCW}")
    if q: a(f"v_mov_b32 v{vBP}, v{vBI}"); a(f"v_mov_b32 v{vBP+1}, v{vBI+1}")
    a(f"s_mov_b32 s{S_STEP}, 0")
    add64(a, S_MEM, S_WS, ws.MEMX if q else ws.MEMG)
    if q:
        a(f"s_mul_i32 s{S_T0}, s{S_GAM}, {MEMSZ}"); add64(a, S_XQ, S_WS, ws.XQ + 4096); add64s(a, S_XQ, S_XQ, S_T0)
    a(f"s_lshl_b32 s{S_T0}, s{S_W}, 13"); a(f"s_add_u32 s{S_T0}, s{S_T0}, 4096")
    add64(a, S_XN, S_WS, ws.XNF); add64s(a, S_XN, S_XN, S_T0)
    a(f"s_lshr_b32 s{S_T0}, s{S_ROLE}, 1"); a(f"s_lshl_b32 s{S_T0}, s{S_T0}, 10"); a(f"s_and_b32 s{S_T0+1}, s{S_ROLE}, 1"); a(f"s_lshl_b32 s{S_T0+1}, s{S_T0+1}, 9"); a(f"s_add_u32 s{S_T0}, s{S_T0}, s{S_T0+1}")
    add64(a, S_PX, S_WS, ws.QPX if q else ws.PX); add64s(a, S_PX, S_PX, S_T0)
    a(f"s_lshl_b32 s{S_T0}, s{S_ROLE}, 7"); add64(a, S_PM, S_WS, ws.QPM if q else ws.PM); add64s(a, S_PM, S_PM, S_T0)
    if q:
        a(f"s_lshl_b32 s{S_T0}, s{S_GAM}, 19"); add64s(a, S_PX, S_PX, S_T0); a(f"s_lshl_b32 s{S_T0}, s{S_GAM}, 17"); add64s(a, S_PM, S_PM, S_T0)
    def xn_load(j): a.vmem(f"global_load_dwordx4 {vr(XN+4*j,4)}, v{vL16}, s[{S_XN}:{S_XN+1}] offset:{j*1024-4096}", f"XN{j}")
    for k in range(4): a(f"v_mov_b32 v{D+k}, 0")
    a("s_waitcnt vmcnt(0) lgkmcnt(0)"); a("s_barrier")
    prof.init(a)
    loop = a.newlabel("A_loop"); a.label(loop)
    if q:
        for k in range(7): a(f"global_load_dwordx4 {vr(MA+4*k,4)}, v{vL16}, s[{S_XQ}:{S_XQ+1}] offset:{k*1024-4096}")
        add64(a, S_XQ, S_XQ, 4 * MEMSZ)
    gather_mem(a, vG0, vG1, 84, 92, 100, "A", abort, prof, 0, 0 if q else OPT["presleepA"])
    prof.stamp(a, 1)
    a.lgkm = []
    if not q:
        for k in range(7): a.ds(f"ds_read_b128 {vr(MA+4*k,4)}, v{vL16} offset:{k*1024}", f"MA{k}")
    def mk_reads(k2):
        b = MK + 4 * (k2 % 2)
        a.ds(f"ds_read_b64 {vr(b,2)}, v{vMK} offset:{k2*512}", f"MKa{k2}"); a.ds(f"ds_read_b64 {vr(b+2,2)}, v{vMK} offset:{k2*512+128}", f"MKb{k2}")
    def tr_reads(k2):
        b = TB + 4 * (k2 % 2)
        a.ds(f"ds_read_b64_tr_b16 {vr(b,2)}, v{vTTr} offset:{k2*1280}", f"TRa{k2}"); a.ds(f"ds_read_b64_tr_b16 {vr(b+2,2)}, v{vTTr} offset:{k2*1280+80}", f"TRb{k2}")
    def score(k2, kt):
        if kt == 1: a.wait_vm(f"XN{2*k2+1}")
        A_ = MK + 4 * (k2 % 2) if kt == 0 else XN + 4 * (2 * k2 + kt - 1)
        C = "0" if k2 == 0 else vr(SC + 4 * kt, 4)
        a(f"v_mfma_f32_16x16x32_bf16 {vr(SC+4*kt,4)}, {vr(A_,4)}, {vr(TB+4*(k2%2),4)}, {C}")
    def cvt(tau, half):
        d = D + 4 * (tau % 3); p = PK + 2 * (tau % 2)
        a(f"v_cvt_pk_bf16_f32 v{p+half}, v{d+2*half}, v{d+2*half+1}")
    def ttw(tau):
        a.ds(f"ds_write_b64 v{vTTw}, {vr(PK+2*(tau%2),2)} offset:{tau*640}", f"TW{tau}")
    fill = {p: [] for p in range(49)}
    def F(p, fn): fill[p].append(fn)
    for tau in range(1, 7):
        for k in range(2):
            F(7 * (tau - 1) + 4 + k, (lambda tau, k: lambda: a(f"v_mov_b64 {vr(D + 4*(tau%3) + 2*k, 2)}, 0"))(tau, k))
    for tau in range(0, 6):
        base = 7 * (tau + 1)
        F(base + 1, (lambda tau: lambda: cvt(tau, 0))(tau)); F(base + 2, (lambda tau: lambda: cvt(tau, 1))(tau)); F(base + 3, (lambda tau: lambda: ttw(tau))(tau))
    for k2 in range(2):
        b = 7 * (2 * k2 + 2) + 5
        F(b, (lambda k2: lambda: tr_reads(k2))(k2)); F(b + 1, (lambda k2: lambda: mk_reads(k2))(k2))
        F(b + 8, (lambda k2: lambda: (a.wait_ds(f"MKb{k2}"), score(k2, 0)))(k2))
        F(b + 9, (lambda k2: lambda: score(k2, 1))(k2)); F(b + 10, (lambda k2: lambda: score(k2, 2))(k2))
    F(40, lambda: mk_reads(2))
    F(46, lambda: tr_reads(2)); F(47, lambda: mk_reads(3))
    XS = OPT["xs"]
    for j in range(8): F(min(2 + XS * j, 47), (lambda j: lambda: xn_load(j))(j))
    a.vm = []
    fill[2].insert(0, lambda: a("s_waitcnt vmcnt(0)"))
    for p in range(49):
        tau, k = divmod(p, 7)
        if tau == 0 and not q: a.wait_ds(f"MA{k}")
        a(smf(D + 4 * (tau % 3), MA + 4 * k, W[p], vIdx))
        for fn in fill[p]: fn()
    if prof.stamp(a, 2): a.lgkm = ["TRb2", "x", "x"]
    a.wait_ds("TRb2")
    score(2, 0); score(2, 1)
    cvt(6, 0); cvt(6, 1); ttw(6); tr_reads(3)
    score(2, 2)
    a.wait_ds("TRb3")
    score(3, 0); score(3, 1); score(3, 2)
    prof.stamp(a, 3)
    O = 84
    a("s_nop 3")
    def dsum(dst, kt, e):
        a(f"v_add_f32_dpp v{dst}, v{SC+4*kt+e}, v{SC+4*kt+e} row_ror:8 row_mask:0xf bank_mask:0x3")
        a(f"v_add_f32_dpp v{dst}, v{SC+4*kt+2+e}, v{SC+4*kt+2+e} row_ror:8 row_mask:0xf bank_mask:0xc")
    dsum(O + 4, 0, 0); dsum(O + 5, 0, 1)
    a.ds(f"ds_write_b64 v{vSC1}, {vr(O+4,2)}", "SCW")
    dsum(O, 1, 0); dsum(O + 1, 1, 1); dsum(O + 2, 2, 0); dsum(O + 3, 2, 1)
    a.ds(f"ds_write_b128 v{vSC0}, {vr(O,4)}", "SCW")
    for k in range(4): a(f"v_mov_b32 v{D+k}, 0")
    a.wait_ds_all()
    prof.stamp(a, 4)
    a("s_barrier")
    prof.stamp(a, 5)
    add64(a, S_XN, S_XN, 32768)
    skip = a.newlabel("A_nosm")
    a(f"s_cmp_ge_u32 s{S_W}, 2"); a(f"s_cbranch_scc1 {skip}")
    X, Mv = 84, 86
    XP = [84, 88, 92, 96]; MP = [86, 90, 94, 98]
    for w in range(4):
        a(f"ds_read_b64 {vr(XP[w],2)}, v{vSMx} offset:{w*SCW}"); a(f"ds_read_b64 {vr(MP[w],2)}, v{vSMm} offset:{w*SCW}")
    a("s_waitcnt lgkmcnt(4)")
    a(f"v_pk_add_f32 {vr(X,2)}, {vr(X,2)}, {vr(88,2)}"); a(f"v_pk_add_f32 {vr(Mv,2)}, {vr(Mv,2)}, {vr(90,2)}")
    a("s_waitcnt lgkmcnt(0)")
    a(f"v_pk_add_f32 {vr(92,2)}, {vr(92,2)}, {vr(96,2)}"); a(f"v_pk_add_f32 {vr(94,2)}, {vr(94,2)}, {vr(98,2)}")
    a(f"v_pk_add_f32 {vr(X,2)}, {vr(X,2)}, {vr(92,2)}"); a(f"v_pk_add_f32 {vr(Mv,2)}, {vr(Mv,2)}, {vr(94,2)}")
    mx, sm = 88, 90
    if q: a(f"v_pk_add_f32 {vr(X,2)}, {vr(X,2)}, {vr(vBP,2)}")
    a(f"v_max3_f32 v{mx}, v{X}, v{X+1}, v{Mv}"); a(f"v_max_f32 v{mx}, v{mx}, v{Mv+1}")
    for r in (8, 4, 2, 1):
        a("s_nop 1"); a(f"v_max_f32_dpp v{mx}, v{mx}, v{mx} row_ror:{r} {DPPM}")
    for r in (X, Mv): a(f"v_pk_add_f32 {vr(r,2)}, {vr(r,2)}, {vr(mx,2)} op_sel_hi:[1,0] neg_lo:[0,1] neg_hi:[0,1]")
    for r in (X, X + 1, Mv, Mv + 1): a(f"v_exp_f32 v{r}, v{r}")
    a("s_nop 0")
    a(f"v_pk_add_f32 {vr(sm,2)}, {vr(X,2)}, {vr(Mv,2)}"); a(f"v_add_f32 v{sm}, v{sm}, v{sm+1}")
    for r in (8, 4, 2, 1):
        a("s_nop 1"); a(f"v_add_f32_dpp v{sm}, v{sm}, v{sm} row_ror:{r} {DPPM}")
    a(f"v_rcp_f32 v{sm}, v{sm}"); a("s_nop 0")
    a(f"v_pk_mul_f32 {vr(X,2)}, {vr(X,2)}, {vr(sm,2)} op_sel_hi:[1,0]"); a(f"v_pk_mul_f32 {vr(Mv,2)}, {vr(Mv,2)}, {vr(sm,2)} op_sel_hi:[1,0]")
    a(f"v_cvt_pk_bf16_f32 v{X}, v{X}, v{X+1}"); a(f"v_cvt_pk_bf16_f32 v{Mv}, v{Mv}, v{Mv+1}")
    a(f"global_store_dword v{vPX}, v{X}, s[{S_PX}:{S_PX+1}]")
    a(f"s_mov_b64 exec, s[{S_EX}:{S_EX+1}]")
    a(f"global_store_dword v{vPM}, v{Mv}, s[{S_PM}:{S_PM+1}]")
    a("s_mov_b64 exec, -1")
    prof.stamp(a, 6)
    a.label(skip)
    if (OPT["psa01"] or OPT["psa23"]) and not q:
        l1, l2 = a.newlabel("ps"), a.newlabel("ps")
        a(f"s_cmp_ge_u32 s{S_W}, 2"); a(f"s_cbranch_scc1 {l1}"); a(f"s_sleep {OPT['psa01']}"); a(f"s_branch {l2}"); a.label(l1); a(f"s_sleep {OPT['psa23']}"); a.label(l2)
    add64(a, S_MEM, S_MEM, MEMSZ); add64(a, S_PX, S_PX, 8192); add64(a, S_PM, S_PM, 2048)
    a(f"s_add_u32 s{S_STEP}, s{S_STEP}, 1"); a(f"s_cmp_lt_u32 s{S_STEP}, {NS}"); a(f"s_cbranch_scc1 {loop}")
    a(f"s_branch {done}")
B_R, B_WL = 8192, 16384
def gen_B(a, prof, abort, done, q=False, pre=None):
    MA, D, UP, VX, P, D2, WT = 4, 32, 48, 64, 96, 108, 116
    P2 = 144
    vIdx, vL16, vG0, vG1, vPMo, vR, vRr, vOut, vWL = 132, 133, 134, 135, 136, 137, 138, 139, 143
    t, t2, t3 = 140, 141, 142
    W = [256 + 8 * f if f < 32 else 176 + 8 * (f - 32) for f in range(42)]
    NS = 64 if q else NSTEP
    a(f"s_sub_u32 s{S_CG}, s{S_ROLE}, 16")
    lane_consts(a, vL16, vG0, vG1, vIdx, t)
    a(f"s_mul_i32 s{S_T0}, s{S_W}, {4*HEADW}"); a(f"s_mul_i32 s{S_T0+1}, s{S_CG}, {2*TILE}"); a(f"s_add_u32 s{S_T0}, s{S_T0}, s{S_T0+1}")
    add64(a, S_T2, S_WS, ws.WB); add64s(a, S_T2, S_T2, S_T0)
    for hh in range(3):
        add64(a, S_T1, S_T2, hh * HEADW); load_frags(a, W[14 * hh:14 * hh + 14], S_T1, vL16)
    add64(a, S_T1, S_T2, 3 * HEADW)
    a(f"s_mul_i32 s{S_T0}, s{S_W}, {2*TILE}"); a(f"s_add_u32 s{S_T0}, s{S_T0}, {B_WL}"); a(f"v_add_u32 v{vWL}, s{S_T0}, v{vL16}")
    for c in range(0, 28, 4):
        for j in range(4): a(f"global_load_dwordx4 {vr(4+4*j,4)}, v{vL16}, s[{S_T1}:{S_T1+1}] offset:{j*1024}")
        add64(a, S_T1, S_T1, 4096); a("s_waitcnt vmcnt(0)")
        for j in range(4): a(f"ds_write_b128 v{vWL}, {vr(4+4*j,4)} offset:{(c+j)*1024}")
        a("s_waitcnt lgkmcnt(0)")
    a(f"v_and_b32 v{t}, 15, v0"); a(f"v_bfe_u32 v{t2}, v0, 4, 2")
    a(f"v_bfe_u32 v{t3}, v0, 5, 1"); a(f"v_lshlrev_b32 v{vPMo}, 8, v{t3}")
    a(f"v_bfe_u32 v{t3}, v0, 3, 1"); a(f"v_lshl_add_u32 v{vPMo}, v{t3}, 7, v{vPMo}")
    a(f"v_and_b32 v{t3}, 7, v0"); a(f"v_lshl_add_u32 v{vPMo}, v{t3}, 4, v{vPMo}")
    a(f"s_lshl_b32 s{S_T0}, s{S_W}, 9"); a(f"v_add_u32 v{vPMo}, s{S_T0}, v{vPMo}")
    a(f"v_and_b32 v{t3}, 1, v{t2}"); a(f"v_mul_u32_u24 v{vR}, {4*144}, v{t3}")
    a(f"v_lshrrev_b32 v{t3}, 1, v{t2}"); a(f"v_mul_u32_u24 v{t3}, 144, v{t3}"); a(f"v_add_u32 v{vR}, v{vR}, v{t3}")
    a(f"s_mul_i32 s{S_T0}, s{S_W}, 1152"); a(f"v_add_u32 v{vR}, s{S_T0}, v{vR}")
    a(f"v_bfe_u32 v{t3}, v0, 1, 1"); a(f"v_lshl_add_u32 v{vR}, v{t3}, 5, v{vR}")
    a(f"v_bfe_u32 v{t3}, v0, 3, 1"); a(f"v_lshl_add_u32 v{vR}, v{t3}, 4, v{vR}")
    a(f"v_bfe_u32 v{t3}, v0, 2, 1"); a(f"v_lshl_add_u32 v{vR}, v{t3}, 3, v{vR}")
    a(f"v_and_b32 v{t3}, 1, v0"); a(f"v_lshl_add_u32 v{vR}, v{t3}, 2, v{vR}"); a(f"v_add_u32 v{vR}, {B_R}, v{vR}")
    a(f"v_and_b32 v{t}, 31, v0"); a(f"s_lshl_b32 s{S_T0}, s{S_W}, 5"); a(f"v_add_u32 v{t}, s{S_T0}, v{t}")
    if q:
        a(f"v_bfe_u32 v{t3}, v{t}, 2, 3"); a(f"v_mul_u32_u24 v{vOut}, 896, v{t3}")
        a(f"v_bfe_u32 v{t3}, v{t}, 6, 1"); a(f"v_lshl_add_u32 v{vOut}, v{t3}, 5, v{vOut}")
        a(f"v_and_b32 v{t3}, 3, v{t}"); a(f"v_lshl_add_u32 v{vOut}, v{t3}, 3, v{vOut}")
        a(f"v_bfe_u32 v{t3}, v{t}, 5, 1"); a(f"v_lshl_add_u32 v{vOut}, v{t3}, 2, v{vOut}")
    else:
        a(f"v_lshlrev_b32 v{vOut}, 2, v{t}")
    a(f"v_bfe_u32 v{t3}, v{t}, 2, 3"); a(f"v_mul_u32_u24 v{vRr}, 144, v{t3}")
    a(f"v_bfe_u32 v{t3}, v{t}, 5, 2"); a(f"v_lshl_add_u32 v{vRr}, v{t3}, 5, v{vRr}")
    a(f"v_and_b32 v{t3}, 3, v{t}"); a(f"v_lshl_add_u32 v{vRr}, v{t3}, 3, v{vRr}"); a(f"v_add_u32 v{vRr}, {B_R}, v{vRr}")
    a(f"s_mov_b32 s{S_STEP}, 0")
    add64(a, S_MEM, S_WS, ws.MEMX if q else ws.MEMG)
    a(f"s_lshr_b32 s{S_T0}, s{S_CG}, 1"); a(f"s_lshl_b32 s{S_T0}, s{S_T0}, 10"); a(f"s_and_b32 s{S_T0+1}, s{S_CG}, 1"); a(f"s_lshl_b32 s{S_T0+1}, s{S_T0+1}, 9"); a(f"s_add_u32 s{S_T0}, s{S_T0}, s{S_T0+1}")
    if q:
        a(f"s_lshl_b32 s{S_T0}, s{S_CG}, 6"); a(f"s_mul_i32 s{S_T0+1}, s{S_GAM}, {64*MEMSZ}"); a(f"s_add_u32 s{S_T0}, s{S_T0}, s{S_T0+1}")
        add64(a, S_OUT, S_WS, ws.QO); add64s(a, S_OUT, S_OUT, S_T0)
    else:
        add64(a, S_OUT, S_WS, ws.MEMG + MEMSZ); add64s(a, S_OUT, S_OUT, S_T0)
    a(f"s_lshl_b32 s{S_T0}, s{S_W}, 11"); add64(a, S_PX, S_WS, ws.QPX if q else ws.PX); add64s(a, S_PX, S_PX, S_T0)
    add64(a, S_PM, S_WS, ws.QPM if q else ws.PM)
    if q:
        a(f"s_lshl_b32 s{S_T0}, s{S_GAM}, 19"); add64s(a, S_PX, S_PX, S_T0); a(f"s_lshl_b32 s{S_T0}, s{S_GAM}, 17"); add64s(a, S_PM, S_PM, S_T0)
    a(f"s_mul_i32 s{S_T0}, s{S_W}, {4*28672}"); a(f"s_lshl_b32 s{S_T0+1}, s{S_CG}, 11"); a(f"s_add_u32 s{S_T0}, s{S_T0}, s{S_T0+1}")
    add64(a, S_VX, S_WS, ws.VXT); add64s(a, S_VX, S_VX, S_T0)
    for hh in range(1, 4): add64(a, S_VX + 2 * hh, S_VX, hh * 28672)
    a("s_waitcnt vmcnt(0) lgkmcnt(0)")
    if pre: pre()
    a("s_barrier")
    prof.init(a)
    loop = a.newlabel("B_loop"); a.label(loop)
    gather_mem(a, vG0, vG1, 36, P2, 44, "B", abort, prof, 0, 0 if q else OPT["presleepB"])
    prof.stamp(a, 1)
    a.lgkm = []
    for k in range(7): a.ds(f"ds_read_b128 {vr(MA+4*k,4)}, v{vL16} offset:{k*1024}", f"MA{k}")
    a("s_waitcnt vmcnt(0)")
    def upos(hh, tp, dw): return UP + 8 * tp + (hh // 2) * 4 + dw * 2 + (hh % 2)
    def vx_load(i):
        tp, r = divmod(i, 4); pr, j = divmod(r, 2); hh = 2 * pr + j
        a(f"global_load_dwordx4 {vr(VX+16*tp+8*pr+4*j,4)}, v{vL16}, s[{S_VX+2*hh}:{S_VX+2*hh+1}] offset:{tp*1024}")
    DL = 156
    regs = [(u, k) for u in range(6) for k in range(7)]; lds = [(u, k) for u in (6, 7) for k in range(7)]
    seq = []
    for i in range(14): seq += [("r",) + regs[3 * i], ("r",) + regs[3 * i + 1], ("r",) + regs[3 * i + 2], ("l",) + lds[i]]
    def wl_read(i):
        u, k = lds[i]; b = WT + 8 * (i % 2); o = ((u - 6) * 7 + k) * 2048
        a.ds(f"ds_read_b128 {vr(b,4)}, v{vWL} offset:{o}", f"WLa{i}"); a.ds(f"ds_read_b128 {vr(b+4,4)}, v{vWL} offset:{o+1024}", f"WLb{i}")
    for k in range(2): a(f"v_mov_b64 {vr(D+2*k,2)}, 0")
    for k in range(4): a(f"v_mov_b64 {vr(DL+2*k,2)}, 0")
    wl_read(0); wl_read(1)
    zdone = {0: -9}
    todo = []
    li = 0; cur = [0]
    for pos, (kind, u, k) in enumerate(seq):
        cur[0] = pos
        if kind == "r":
            if u == 0: a.wait_ds(f"MA{k}") if f"MA{k}" in a.lgkm else None
            if k == 0: assert zdone[u] <= pos - 2, (u, pos, zdone)
            a(smf(D + 4 * (u % 3), MA + 4 * k, W[u * 7 + k], vIdx))
            if k == 2 and u < 5: todo += [(pos + 1, (lambda u: lambda: a(f"v_mov_b64 {vr(D + 4*((u+1)%3), 2)}, 0"))(u)), (pos + 2, (lambda u, : lambda: (a(f"v_mov_b64 {vr(D + 4*((u+1)%3) + 2, 2)}, 0"), zdone.__setitem__(u + 1, cur[0])))(u))]
            dd = D + 4 * (u % 3)
        else:
            if f"MA{k}" in a.lgkm: a.wait_ds(f"MA{k}")
            a.wait_ds(f"WLb{li}")
            a(smf(DL + 4 * (u - 6), MA + 4 * k, WT + 8 * (li % 2), vIdx))
            if li + 2 < 14: wl_read(li + 2)
            li += 1; dd = DL + 4 * (u - 6)
        if k == 6:
            hh, tp = divmod(u, 2)
            for dw in range(2): todo.append((pos + 3 + dw, (lambda hh, tp, dw, dd: lambda: a(f"v_cvt_pk_bf16_f32 v{upos(hh,tp,dw)}, v{dd+2*dw}, v{dd+2*dw+1}"))(hh, tp, dw, dd)))
        if pos % OPT["vs"] == 1 and pos // OPT["vs"] < 8: vx_load(pos // OPT["vs"])
        todo.sort(key=lambda x: x[0])
        if todo and todo[0][0] <= pos: todo.pop(0)[1]()
    a("s_nop 7")
    for p_, fn in todo: fn()
    for hh in range(4): add64(a, S_VX + 2 * hh, S_VX + 2 * hh, 16 * 28672)
    for k in range(8): a(f"v_mov_b32 v{D2+k}, 0")
    prof.stamp(a, 2)
    def mkp(Pr):
        def f(count=False):
            if count: return 3
            a(f"global_load_dwordx4 {vr(Pr,4)}, v{vL16}, s[{S_PX}:{S_PX+1}] sc1")
            a(f"global_load_dwordx4 {vr(Pr+4,4)}, v{vL16}, s[{S_PX}:{S_PX+1}] offset:1024 sc1")
            a(f"global_load_dwordx4 {vr(Pr+8,4)}, v{vPMo}, s[{S_PM}:{S_PM+1}] sc1")
        return f
    def post(tp, part):
        d = D2 + 4 * tp
        if part == 0: a(f"v_permlane32_swap_b32 v{d}, v{d+1}"); a(f"v_permlane32_swap_b32 v{d+2}, v{d+3}")
        if part == 1: a(f"v_add_f32 v{d}, v{d}, v{d+1}"); a(f"v_add_f32 v{d+2}, v{d+2}, v{d+3}")
        if part == 2: a(f"ds_write_b32 v{vR}, v{d} offset:{tp*64}"); a(f"ds_write_b32 v{vR}, v{d+2} offset:{tp*64+2*144}")
    def comb(Pr):
        def f():
            prof.stamp(a, 3)
            a(smf(D2, Pr + 8, UP, vIdx)); a(smf(D2, Pr, VX, vIdx)); a(smf(D2, Pr + 4, VX + 8, vIdx))
            a(smf(D2 + 4, Pr + 8, UP + 8, vIdx)); a(smf(D2 + 4, Pr, VX + 16, vIdx)); a(smf(D2 + 4, Pr + 4, VX + 24, vIdx))
        return f
    poll(a, "Bp", mkp(P), mkp(P2), range(P, P + 12), range(P2, P2 + 12), t, abort, comb(P), comb(P2), OPT["presleepP"])
    post(0, 0); post(0, 1); post(0, 2)
    a("s_nop 0")
    post(1, 0); post(1, 1); post(1, 2)
    a("s_waitcnt lgkmcnt(0)"); a("s_barrier")
    prof.stamp(a, 4)
    for w in range(4): a(f"ds_read_b64 {vr(32+2*w,2)}, v{vRr} offset:{w*1152}")
    a("s_waitcnt lgkmcnt(2)"); a("v_pk_add_f32 v[32:33], v[32:33], v[34:35]")
    a("s_waitcnt lgkmcnt(0)"); a("v_pk_add_f32 v[36:37], v[36:37], v[38:39]"); a("v_pk_add_f32 v[32:33], v[32:33], v[36:37]")
    a("v_cvt_pk_bf16_f32 v32, v32, v33"); a("v_min_u32 v32, -2, v32")
    a(f"global_store_dword v{vOut}, v32, s[{S_OUT}:{S_OUT+1}]")
    prof.stamp(a, 5)
    add64(a, S_MEM, S_MEM, MEMSZ); add64(a, S_OUT, S_OUT, MEMSZ); add64(a, S_PX, S_PX, 8192); add64(a, S_PM, S_PM, 2048)
    a(f"s_add_u32 s{S_STEP}, s{S_STEP}, 1"); a(f"s_cmp_lt_u32 s{S_STEP}, {NS}"); a(f"s_cbranch_scc1 {loop}")
    a(f"s_branch {done}")
def gen_F(a, abort, done):
    vL16, vG0, vG1, vIdx, t = 10, 11, 12, 13, 14
    lane_consts(a, vL16, vG0, vG1, vIdx, t)
    add64(a, S_MEM, S_WS, ws.MEMG); add64(a, S_MX, S_WS, ws.MEMX)
    PFD = OPT["pfd"]
    a(f"v_and_b32 v30, 63, v0"); a(f"v_lshlrev_b32 v30, 7, v30")
    a(f"s_lshl_b32 s{S_T0}, s{S_W}, 13"); add64(a, S_XN, S_WS, ws.XNF); add64s(a, S_XN, S_XN, S_T0)
    a(f"v_mov_b32 v31, v30")
    a(f"s_mov_b32 s{S_T2}, {ws.PM}"); a(f"s_mov_b32 s{S_T2+1}, 2048"); a(f"s_mov_b32 s{S_T3}, {15*128}")
    a(f"s_cmp_eq_u32 s{S_W}, 1"); a(f"s_cselect_b32 s{S_T2}, {ws.PX}, s{S_T2}"); a(f"s_cselect_b32 s{S_T2+1}, 8192, s{S_T2+1}"); a(f"s_cselect_b32 s{S_T3}, 8064, s{S_T3}")
    a(f"s_cmp_eq_u32 s{S_W}, 0"); a(f"s_cselect_b32 s{S_T2}, {ws.MEMG}, s{S_T2}"); a(f"s_cselect_b32 s{S_T2+1}, 7168, s{S_T2+1}"); a(f"s_cselect_b32 s{S_T3}, {55*128}, s{S_T3}")
    a(f"v_min_u32 v31, s{S_T3}, v30")
    add64s(a, S_PX, S_WS, S_T2); a(f"s_mov_b32 s{S_CG}, s{S_T2+1}")
    def touch():
        a(f"global_load_dword v33, v30, s[{S_XN}:{S_XN+1}]"); a(f"global_load_dword v34, v31, s[{S_PX}:{S_PX+1}]")
        add64(a, S_XN, S_XN, 32768); add64s(a, S_PX, S_PX, S_CG)
    for _ in range(PFD): touch()
    a(f"s_mov_b32 s{S_STEP}, 0")
    loop = a.newlabel("F_loop"); a.label(loop)
    nt = a.newlabel("F_nt")
    a(f"s_cmp_ge_u32 s{S_STEP}, {64-PFD}"); a(f"s_cbranch_scc1 {nt}"); touch(); a.label(nt)
    lp, lg = a.newlabel("F_poll"), a.newlabel("F_got")
    a(f"s_mov_b32 s{S_CNT}, 0")
    a.label(lp)
    a(f"global_load_dwordx4 v[16:19], v{vG0}, s[{S_MEM}:{S_MEM+1}] sc1"); a(f"global_load_dwordx4 v[20:23], v{vG1}, s[{S_MEM}:{S_MEM+1}] sc1")
    a("s_waitcnt vmcnt(0)")
    maxchk(a, t, range(16, 24)); a(f"s_cbranch_vccz {lg}")
    a(f"s_add_u32 s{S_CNT}, s{S_CNT}, 1"); a(f"s_cmp_gt_u32 s{S_CNT}, {POLL_LIMIT}"); a(f"s_cbranch_scc1 {abort}"); a("s_sleep 4"); a(f"s_branch {lp}")
    a.label(lg)
    a(f"global_store_dwordx4 v{vG0}, v[16:19], s[{S_MX}:{S_MX+1}] sc1"); a(f"global_store_dwordx4 v{vG1}, v[20:23], s[{S_MX}:{S_MX+1}] sc1")
    a("s_waitcnt vmcnt(0)")
    add64(a, S_MEM, S_MEM, MEMSZ); add64(a, S_MX, S_MX, MEMSZ)
    a(f"s_add_u32 s{S_STEP}, s{S_STEP}, 1"); a(f"s_cmp_lt_u32 s{S_STEP}, 64"); a(f"s_cbranch_scc1 {loop}")
    a(f"s_branch {done}")
def gen_L(a, abort, done, S_X):
    RS2 = 912
    vO, vLd, vTr, vHo, vP0, vP1, vP2, t, t2 = 2, 3, 4, 5, 6, 7, 8, 9, 10
    AT, XR, Fv = 12, 20, 32
    S_HB, S_HN, S_X2, S_TX = 22, 24, 26, 28
    a("; ---------------- L role")
    a(f"v_and_b32 v{t}, 31, v0"); a(f"v_min_u32 v{t}, 27, v{t}"); a(f"v_bfe_u32 v{t2}, v0, 5, 1"); a(f"s_lshl_b32 s{S_T0}, s{S_W}, 1"); a(f"v_add_u32 v{t2}, s{S_T0}, v{t2}")
    a(f"v_mul_u32_u24 v{vO}, 896, v{t2}"); a(f"v_lshl_add_u32 v{vO}, v{t}, 4, v{vO}")
    a(f"v_mul_u32_u24 v{vLd}, {RS2}, v{t2}"); a(f"v_lshl_add_u32 v{vLd}, v{t}, 4, v{vLd}")
    a(f"v_and_b32 v{t}, 31, v0"); a(f"v_cmp_gt_u32 s[{S_EX}:{S_EX+1}], 28, v{t}")
    a(f"v_bfe_u32 v{t}, v0, 2, 2"); a(f"v_mul_u32_u24 v{vTr}, {RS2}, v{t}"); a(f"v_and_b32 v{t}, 3, v0"); a(f"v_lshl_add_u32 v{vTr}, v{t}, 3, v{vTr}")
    a(f"v_bfe_u32 v{t}, v0, 4, 2"); a(f"s_mul_i32 s{S_T0}, s{S_W}, 7"); a(f"v_add_u32 v{t2}, s{S_T0}, v{t}")
    a(f"v_lshl_add_u32 v{vTr}, v{t2}, 5, v{vTr}")
    a(f"v_lshlrev_b32 v{vHo}, 10, v{t2}"); a(f"v_and_b32 v{t2}, 15, v0"); a(f"v_lshl_add_u32 v{vHo}, v{t2}, 4, v{vHo}"); a(f"s_lshl_b32 s{S_T0}, s{S_GAM}, 8"); a(f"v_add_u32 v{vHo}, s{S_T0}, v{vHo}")
    a(f"v_cmp_eq_u32 vcc, 3, v{t}"); a(f"v_mov_b32 v{vP2}, 4"); a(f"v_mov_b32 v{t2}, 3"); a("s_nop 0"); a(f"v_cndmask_b32 v{vP2}, v{vP2}, v{t2}, vcc")
    vTr1, vHo1 = 11, 1
    a(f"v_lshl_add_u32 v{vTr1}, v{vP2}, 5, v{vTr}"); a(f"v_lshl_add_u32 v{vHo1}, v{vP2}, 10, v{vHo}")
    a(f"v_and_b32 v{t}, 63, v0"); a(f"v_lshlrev_b32 v{vP0}, 7, v{t}"); a(f"v_min_u32 v{vP1}, {55*128}, v{vP0}"); a(f"v_min_u32 v{vP2}, {15*128}, v{vP0}")
    a(f"s_mul_i32 s{S_T0}, s{S_GAM}, {64*MEMSZ}"); add64(a, S_MEM, S_WS, ws.QO); add64s(a, S_MEM, S_MEM, S_T0)
    a(f"s_mul_i32 s{S_T0}, s{S_GAM}, {8*896}"); add64s(a, S_X2, S_X, S_T0); add64(a, S_HB, S_WS, ws.HB); add64s(a, S_HB, S_HB, S_T0)
    add64(a, S_HN, S_WS, ws.HNF)
    PFD = 2
    S_A, S_B_, S_BST = 30, 32, 34
    a(f"s_lshl_b32 s{S_T0}, s{S_W}, 13"); add64(a, S_A, S_WS, ws.XNF); add64s(a, S_A, S_A, S_T0)
    a(f"s_mul_i32 s{S_T1}, s{S_GAM}, {MEMSZ}"); a(f"s_add_u32 s{S_T1}, s{S_T1}, {ws.XQ}"); a(f"s_mov_b32 s{S_BST}, {4*MEMSZ}")
    a(f"s_cmp_eq_u32 s{S_W}, 1"); a(f"s_lshl_b32 s{S_T2}, s{S_GAM}, 19"); a(f"s_add_u32 s{S_T2}, s{S_T2}, {ws.QPX}")
    a(f"s_cmp_eq_u32 s{S_W}, 1"); a(f"s_cselect_b32 s{S_T1}, s{S_T2}, s{S_T1}"); a(f"s_cselect_b32 s{S_BST}, 8192, s{S_BST}")
    a(f"s_lshl_b32 s{S_T2}, s{S_GAM}, 17"); a(f"s_add_u32 s{S_T2}, s{S_T2}, {ws.QPM}")
    a(f"s_cmp_eq_u32 s{S_W}, 2"); a(f"s_cselect_b32 s{S_T1}, s{S_T2}, s{S_T1}"); a(f"s_cselect_b32 s{S_BST}, 2048, s{S_BST}")
    a(f"s_mul_i32 s{S_T2}, s{S_GAM}, {64*MEMSZ}"); a(f"s_add_u32 s{S_T2}, s{S_T2}, {ws.QO}")
    a(f"s_cmp_eq_u32 s{S_W}, 3"); a(f"s_cselect_b32 s{S_T1}, s{S_T2}, s{S_T1}"); a(f"s_cselect_b32 s{S_BST}, {MEMSZ}, s{S_BST}")
    add64s(a, S_B_, S_WS, S_T1)
    l1, l2 = a.newlabel("Lw"), a.newlabel("Lw")
    a(f"s_cmp_eq_u32 s{S_W}, 1"); a(f"s_cbranch_scc0 {l1}"); a(f"v_mov_b32 v{vP1}, v{vP0}"); a.label(l1)
    a(f"s_cmp_eq_u32 s{S_W}, 2"); a(f"s_cbranch_scc0 {l2}"); a(f"v_mov_b32 v{vP1}, v{vP2}"); a.label(l2)
    def touch():
        a(f"global_load_dword v{t}, v{vP0}, s[{S_A}:{S_A+1}]"); a(f"global_load_dword v{t2}, v{vP1}, s[{S_B_}:{S_B_+1}]")
        add64(a, S_A, S_A, 32768); add64s(a, S_B_, S_B_, S_BST)
    for _ in range(PFD): touch()
    a(f"s_mov_b32 s{S_STEP}, 0")
    loop = a.newlabel("L_loop"); a.label(loop)
    nt = a.newlabel("L_nt")
    a(f"s_cmp_ge_u32 s{S_STEP}, {64-PFD}"); a(f"s_cbranch_scc1 {nt}"); touch(); a.label(nt)
    a(f"global_load_dwordx4 {vr(XR,4)}, v{vO}, s[{S_X2}:{S_X2+1}]"); a(f"global_load_dwordx4 {vr(XR+4,4)}, v{vO}, s[{S_X2}:{S_X2+1}] offset:448")
    lp, lg = a.newlabel("L_poll"), a.newlabel("L_got")
    a(f"s_mov_b32 s{S_CNT}, 0")
    a.label(lp)
    a(f"global_load_dwordx4 {vr(AT,4)}, v{vO}, s[{S_MEM}:{S_MEM+1}] sc1"); a(f"global_load_dwordx4 {vr(AT+4,4)}, v{vO}, s[{S_MEM}:{S_MEM+1}] offset:448 sc1")
    a("s_waitcnt vmcnt(0)")
    maxchk(a, t, range(AT, AT + 8)); a(f"s_cbranch_vccz {lg}")
    a(f"s_add_u32 s{S_CNT}, s{S_CNT}, 1"); a(f"s_cmp_gt_u32 s{S_CNT}, {POLL_LIMIT}"); a(f"s_cbranch_scc1 {abort}"); a("s_sleep 2"); a(f"s_branch {lp}")
    a.label(lg)
    for d in range(8):
        a(f"v_lshlrev_b32 v{Fv+2*d}, 16, v{AT+d}"); a(f"v_and_b32 v{Fv+2*d+1}, 0xffff0000, v{AT+d}")
        a(f"v_lshlrev_b32 v{t}, 16, v{XR+d}"); a(f"v_and_b32 v{t2}, 0xffff0000, v{XR+d}")
        a(f"v_add_f32 v{Fv+2*d}, v{Fv+2*d}, v{t}"); a(f"v_add_f32 v{Fv+2*d+1}, v{Fv+2*d+1}, v{t2}")
        a(f"v_cvt_pk_bf16_f32 v{AT+d}, v{Fv+2*d}, v{Fv+2*d+1}")
    a(f"global_store_dwordx4 v{vO}, {vr(AT,4)}, s[{S_HB}:{S_HB+1}]"); a(f"global_store_dwordx4 v{vO}, {vr(AT+4,4)}, s[{S_HB}:{S_HB+1}] offset:448")
    for d in range(8): a(f"v_lshlrev_b32 v{Fv+2*d}, 16, v{AT+d}"); a(f"v_and_b32 v{Fv+2*d+1}, 0xffff0000, v{AT+d}")
    def rowsum(r):
        a(f"v_cndmask_b32 v{r}, 0, v{r}, s[{S_EX}:{S_EX+1}]")
        for k in (8, 4, 2, 1): a("s_nop 1"); a(f"v_add_f32_dpp v{r}, v{r}, v{r} row_ror:{k} {DPPM}")
        a(f"v_mov_b32 v{t2}, v{r}"); a("s_nop 1"); a(f"v_permlane16_swap_b32 v{r}, v{t2}"); a(f"v_add_f32 v{r}, v{r}, v{t2}")
    a(f"v_add_f32 v{t}, v{Fv}, v{Fv+1}")
    for d in range(2, 16): a(f"v_add_f32 v{t}, v{t}, v{Fv+d}")
    rowsum(t)
    a(f"v_mul_f32 v{t}, 0x3b124925, v{t}")
    for d in range(16): a(f"v_sub_f32 v{Fv+d}, v{Fv+d}, v{t}")
    a(f"v_mul_f32 v{t}, v{Fv}, v{Fv}")
    for d in range(1, 16): a(f"v_fmac_f32 v{t}, v{Fv+d}, v{Fv+d}")
    rowsum(t)
    a(f"v_mov_b32 v{t2}, 0x3727c5ac"); a(f"v_fmac_f32 v{t2}, 0x3b124925, v{t}"); a(f"v_rsq_f32 v{t2}, v{t2}"); a("s_nop 0")
    for d in range(16): a(f"v_mul_f32 v{Fv+d}, v{Fv+d}, v{t2}")
    for d in range(8): a(f"v_cvt_pk_bf16_f32 v{XR+d}, v{Fv+2*d}, v{Fv+2*d+1}")
    a(f"ds_write_b128 v{vLd}, {vr(XR,4)}"); a(f"ds_write_b128 v{vLd}, {vr(XR+4,4)} offset:448")
    a("s_waitcnt lgkmcnt(0)"); a("s_barrier")
    a(f"ds_read_b64_tr_b16 {vr(Fv,2)}, v{vTr}"); a(f"ds_read_b64_tr_b16 {vr(Fv+2,2)}, v{vTr} offset:{4*RS2}")
    a(f"ds_read_b64_tr_b16 {vr(Fv+4,2)}, v{vTr1}"); a(f"ds_read_b64_tr_b16 {vr(Fv+6,2)}, v{vTr1} offset:{4*RS2}")
    a("s_waitcnt lgkmcnt(0)")
    for d in range(8): a(f"v_min_u32 v{Fv+d}, -2, v{Fv+d}")
    a(f"global_store_dwordx4 v{vHo}, {vr(Fv,4)}, s[{S_HN}:{S_HN+1}] sc1"); a(f"global_store_dwordx4 v{vHo1}, {vr(Fv+4,4)}, s[{S_HN}:{S_HN+1}] sc1")
    for r in (vLd, vTr, vTr1): a(f"v_xor_b32 v{r}, 8192, v{r}")
    add64(a, S_MEM, S_MEM, MEMSZ); add64(a, S_X2, S_X2, 32 * 896); add64(a, S_HB, S_HB, 32 * 896); add64(a, S_HN, S_HN, 28 * 1024)
    a(f"s_add_u32 s{S_STEP}, s{S_STEP}, 1"); a(f"s_cmp_lt_u32 s{S_STEP}, 64"); a(f"s_cbranch_scc1 {loop}")
    a("s_waitcnt vmcnt(0)")
    a(f"s_branch {done}")
```

```python
from asmlib import *
from layout import *
def add64(a, dst, src, imm):
    a(f"s_add_u32 s{dst}, s{src}, {imm}"); a(f"s_addc_u32 s{dst+1}, s{src+1}, 0")
def add64s(a, dst, src, sreg):
    a(f"s_add_u32 s{dst}, s{src}, s{sreg}"); a(f"s_addc_u32 s{dst+1}, s{src+1}, 0")
def maxchk(a, t, regs):
    regs = list(regs)
    a(f"v_max3_u32 v{t}, v{regs[0]}, v{regs[1]}, v{regs[2]}"); regs = regs[3:]
    while len(regs) >= 2:
        a(f"v_max3_u32 v{t}, v{t}, v{regs[0]}, v{regs[1]}"); regs = regs[2:]
    if regs: a(f"v_max_u32 v{t}, v{t}, v{regs[0]}")
    a(f"v_cmp_eq_u32 vcc, -1, v{t}")
def gen_g1(a, S_WS, S_W, S_BLK, S_KARG, abort, sfree, POLL_LIMIT):
    T0, T1, SH, SW1, SB1, SG, SCNT, SS = sfree, sfree + 2, sfree + 4, sfree + 6, sfree + 8, sfree + 10, sfree + 12, sfree + 13
    vL16, vWg, vWl, vTr, vGo, t, t2 = 2, 3, 4, 5, 6, 7, 8
    WR, AO, HB_, ACC = 12, 20, 28, 64
    RS = 80
    a("; ---------------- G1 role")
    a(f"s_load_dwordx2 s[{SW1}:{SW1+1}], s[{S_KARG}:{S_KARG+1}], 64"); a(f"s_load_dwordx2 s[{SB1}:{SB1+1}], s[{S_KARG}:{S_KARG+1}], 72")
    a(f"v_and_b32 v{t}, 63, v0"); a(f"v_lshlrev_b32 v{vL16}, 4, v{t}")
    a(f"v_lshrrev_b32 v{t2}, 2, v{t}"); a(f"v_mul_u32_u24 v{vWg}, 3584, v{t2}"); a(f"v_and_b32 v{t}, 3, v0"); a(f"v_lshl_add_u32 v{vWg}, v{t}, 4, v{vWg}")
    a(f"v_mul_u32_u24 v{vWl}, {RS}, v{t2}"); a(f"v_lshl_add_u32 v{vWl}, v{t}, 4, v{vWl}"); a(f"s_mul_i32 s{T0}, s{S_W}, {32*RS}"); a(f"v_add_u32 v{vWl}, s{T0}, v{vWl}")
    a(f"v_bfe_u32 v{t}, v0, 4, 2"); a(f"v_lshlrev_b32 v{t}, 3, v{t}"); a(f"v_bfe_u32 v{t2}, v0, 2, 2"); a(f"v_add_u32 v{t}, v{t}, v{t2}"); a(f"v_mul_u32_u24 v{vTr}, {RS}, v{t}")
    a(f"v_and_b32 v{t}, 3, v0"); a(f"v_lshl_add_u32 v{vTr}, v{t}, 4, v{vTr}"); a(f"v_add_u32 v{vTr}, s{T0}, v{vTr}")
    a("s_waitcnt lgkmcnt(0)")
    a(f"s_lshl_b32 s{T0}, s{S_BLK}, 6"); add64s(a, SW1, SW1, T0); add64s(a, SB1, SB1, T0)
    a(f"s_mul_i32 s{T0}, s{S_W}, {7*1024}"); add64(a, SH, S_WS, ws.HNF + 4096); add64s(a, SH, SH, T0)
    for k in range(56): a(f"v_mov_b32 v{ACC+k}, 0")
    def wload():
        a(f"global_load_dwordx4 {vr(WR,4)}, v{vWg}, s[{SW1}:{SW1+1}]"); add64(a, T1, SW1, 16 * 3584)
        a(f"global_load_dwordx4 {vr(WR+4,4)}, v{vWg}, s[{T1}:{T1+1}]"); add64(a, SW1, SW1, 32 * 3584)
    wload()
    a(f"s_mov_b32 s{SS}, 0")
    loop = a.newlabel("G1_loop"); a.label(loop)
    a("s_waitcnt vmcnt(0)")
    a(f"ds_write_b128 v{vWl}, {vr(WR,4)}"); a(f"ds_write_b128 v{vWl}, {vr(WR+4,4)} offset:{16*RS}")
    for mu in range(2):
        for hf in range(2): a(f"ds_read_b64_tr_b16 {vr(AO+4*mu+2*hf,2)}, v{vTr} offset:{8*mu+4*hf*RS}")
    nl = a.newlabel("G1_nw")
    a(f"s_cmp_ge_u32 s{SS}, 63"); a(f"s_cbranch_scc1 {nl}"); wload(); a.label(nl)
    lp, lg = a.newlabel("G1_poll"), a.newlabel("G1_got")
    a(f"s_mov_b32 s{SCNT}, 0")
    a.label(lp)
    for i in range(7): a(f"global_load_dwordx4 {vr(HB_+4*i,4)}, v{vL16}, s[{SH}:{SH+1}] offset:{i*1024-4096} sc1")
    a("s_waitcnt vmcnt(0)")
    maxchk(a, t, range(HB_, HB_ + 28)); a(f"s_cbranch_vccz {lg}")
    a(f"s_add_u32 s{SCNT}, s{SCNT}, 1"); a(f"s_cmp_gt_u32 s{SCNT}, {POLL_LIMIT}"); a(f"s_cbranch_scc1 {abort}"); a("s_sleep 8"); a(f"s_branch {lp}")
    a.label(lg)
    a("s_waitcnt lgkmcnt(0)")
    for i in range(7):
        for mu in range(2):
            d = ACC + (mu * 7 + i) * 4
            a(f"v_mfma_f32_16x16x32_bf16 {vr(d,4)}, {vr(AO+4*mu,4)}, {vr(HB_+4*i,4)}, {vr(d,4)}")
    add64(a, SH, SH, 28 * 1024)
    a(f"s_add_u32 s{SS}, s{SS}, 1"); a(f"s_cmp_lt_u32 s{SS}, 64"); a(f"s_cbranch_scc1 {loop}")
    BI = 12
    a(f"v_bfe_u32 v{t}, v0, 4, 2"); a(f"v_lshlrev_b32 v{t}, 4, v{t}")
    a(f"global_load_dwordx4 {vr(28,4)}, v{t}, s[{SB1}:{SB1+1}]"); a("s_waitcnt vmcnt(0)")
    for d in range(4): a(f"v_lshlrev_b32 v{BI+2*d}, 16, v{28+d}"); a(f"v_and_b32 v{BI+2*d+1}, 0xffff0000, v{28+d}")
    a(f"v_bfe_u32 v{t}, v0, 2, 1"); a(f"v_mul_u32_u24 v{vGo}, {56*1024}, v{t}")
    a(f"v_bfe_u32 v{t}, v0, 3, 1"); a(f"v_lshlrev_b32 v{t}, 2, v{t}"); a(f"v_and_b32 v{t2}, 3, v0"); a(f"v_add_u32 v{t}, v{t}, v{t2}")
    a(f"v_bfe_u32 v{t2}, v0, 4, 2"); a(f"v_lshl_add_u32 v{t}, v{t2}, 4, v{t}"); a(f"v_lshl_add_u32 v{vGo}, v{t}, 4, v{vGo}")
    a(f"s_lshl_b32 s{T0}, s{S_BLK}, 10"); add64(a, SG, S_WS, ws.GF); add64s(a, SG, SG, T0)
    a(f"v_mov_b32 v30, 0xc0135761"); a(f"v_mov_b32 v31, 0xbdd2d3e8")
    PK = 32
    for i in range(7):
        for mu in range(2):
            d = ACC + (mu * 7 + i) * 4
            for j in range(4):
                x = d + j
                a(f"v_add_f32 v{x}, v{x}, v{BI+4*mu+j}")
                a(f"v_mul_f32 v{t}, v{x}, v{x}"); a(f"v_fma_f32 v{t}, v{t}, v31, v30"); a(f"v_mul_f32 v{t}, v{t}, v{x}")
                a(f"v_exp_f32 v{t}, v{t}"); a("s_nop 0"); a(f"v_add_f32 v{t}, 1.0, v{t}"); a(f"v_rcp_f32 v{t}, v{t}"); a("s_nop 0"); a(f"v_mul_f32 v{x}, v{x}, v{t}")
            a(f"v_cvt_pk_bf16_f32 v{PK+2*mu}, v{d}, v{d+1}"); a(f"v_cvt_pk_bf16_f32 v{PK+2*mu+1}, v{d+2}, v{d+3}")
        a(f"s_mul_i32 s{T0}, s{S_W}, 7"); a(f"s_add_u32 s{T0}, s{T0}, {i}"); a(f"s_lshr_b32 s{T0+1}, s{T0}, 1"); a(f"s_mul_i32 s{T0+1}, s{T0+1}, {2*56*1024}")
        a(f"s_and_b32 s{T0}, s{T0}, 1"); a(f"s_lshl_b32 s{T0}, s{T0}, 7"); a(f"s_add_u32 s{T0}, s{T0}, s{T0+1}"); add64s(a, T1, SG, T0)
        a(f"global_store_dwordx4 v{vGo}, {vr(PK,4)}, s[{T1}:{T1+1}]"); a("s_nop 1")
    a("s_waitcnt vmcnt(0)")
def gen_k3(name, rt=False):
    a = Asm()
    a.raw(kernel_begin(name))
    E = f"L_{name}_end"
    a("s_cmp_ge_u32 s2, 224"); a(f"s_cbranch_scc1 {E}")
    if rt: rt_begin(a)
    S_WS, S_W, S_TG, S_DG, S_W2, S_B2, S_OUT, S_G, T0, T1, SM0, SK = 4, 8, 9, 10, 12, 14, 16, 18, 20, 22, 24, 25
    a(f"s_load_dwordx2 s[{S_WS}:{S_WS+1}], s[0:1], 112"); a(f"s_load_dwordx2 s[{S_W2}:{S_W2+1}], s[0:1], 80"); a(f"s_load_dwordx2 s[{S_B2}:{S_B2+1}], s[0:1], 88"); a(f"s_load_dwordx2 s[{S_OUT}:{S_OUT+1}], s[0:1], 96")
    a("v_lshrrev_b32 v1, 6, v0"); a("s_nop 0"); a(f"v_readfirstlane_b32 s{S_W}, v1")
    a(f"s_mul_i32 s{S_TG}, s2, 9363"); a(f"s_lshr_b32 s{S_TG}, s{S_TG}, 16"); a(f"s_mul_i32 s{T0}, s{S_TG}, 7"); a(f"s_sub_u32 s{S_DG}, s2, s{T0}")
    a("s_waitcnt lgkmcnt(0)")
    NST = 8
    vL16, vWg, vA, vB, t, t2 = 2, 3, 4, 5, 6, 7
    AO, BO, ACC = 8, 24, 48
    a(f"v_and_b32 v{t}, 63, v0"); a(f"v_lshlrev_b32 v{vL16}, 4, v{t}")
    a(f"v_lshrrev_b32 v{t2}, 3, v{t}"); a(f"s_lshl_b32 s{T0}, s{S_W}, 3"); a(f"v_add_u32 v{t2}, s{T0}, v{t2}"); a(f"v_lshlrev_b32 v{vWg}, 12, v{t2}")
    a(f"v_and_b32 v{t}, 7, v0"); a(f"v_lshl_add_u32 v{vWg}, v{t}, 4, v{vWg}")
    a(f"s_lshl_b32 s{T0}, s{S_TG}, 7"); add64s(a, S_W2, S_W2, T0)
    a(f"s_lshl_b32 s{T0}, s{S_DG}, 2"); a(f"s_add_u32 s{T0}, s{T0}, s{S_W}"); a(f"s_mul_i32 s{T0}, s{T0}, {56*1024}"); add64(a, S_G, S_WS, ws.GF); add64s(a, S_G, S_G, T0)
    a(f"s_lshl_b32 s{SM0}, s{S_W}, 10")
    def dma(stage):
        a(f"s_add_u32 s{T0}, s{SM0}, {stage*8192}"); a(f"s_mov_b32 m0, s{T0}"); a("s_nop 0")
        a(f"global_load_lds_dwordx4 v{vWg}, s[{S_W2}:{S_W2+1}]"); add64(a, S_W2, S_W2, 32 * 4096)
        a(f"s_add_u32 s{T0}, s{T0}, 4096"); a(f"s_mov_b32 m0, s{T0}"); a("s_nop 0")
        a(f"global_load_lds_dwordx4 v{vL16}, s[{S_G}:{S_G+1}]"); add64(a, S_G, S_G, 1024)
    for st in range(NST - 1): dma(st)
    a(f"s_and_b32 s{T0}, s{S_W}, 1"); a(f"s_lshl_b32 s{T0}, s{T0}, 11"); a(f"s_add_u32 s{T0}, s{T0}, 4096"); a(f"v_add_u32 v{vA}, s{T0}, v{vL16}")
    a(f"v_bfe_u32 v{t}, v0, 4, 2"); a(f"v_lshlrev_b32 v{t}, 3, v{t}"); a(f"v_bfe_u32 v{t2}, v0, 2, 2"); a(f"v_add_u32 v{t}, v{t}, v{t2}"); a(f"v_lshlrev_b32 v{vB}, 7, v{t}")
    a(f"v_and_b32 v{t}, 3, v0"); a(f"v_lshl_add_u32 v{vB}, v{t}, 3, v{vB}"); a(f"s_lshr_b32 s{T0}, s{S_W}, 1"); a(f"s_lshl_b32 s{T0}, s{T0}, 6"); a(f"v_add_u32 v{vB}, s{T0}, v{vB}")
    def reads(stage, buf):
        o = stage * 8192
        for mu in range(2): a(f"ds_read_b128 {vr(AO+8*buf+4*mu,4)}, v{vA} offset:{o+mu*1024}")
        for j in range(2):
            for hf in range(2): a(f"ds_read_b64_tr_b16 {vr(BO+8*buf+4*j+2*hf,2)}, v{vB} offset:{o+j*32+hf*512}")
    for ks in range(56):
        st = ks % NST
        younger = min(NST - 2, 55 - ks)
        a(f"s_waitcnt vmcnt({2*younger})"); a("s_barrier")
        if ks + NST - 1 < 56: dma((ks + NST - 1) % NST)
        reads(st, ks % 2)
        a("s_waitcnt lgkmcnt(0)")
        for j in range(2):
            for mu in range(2):
                d = ACC + (j * 2 + mu) * 4
                a(f"v_mfma_f32_16x16x32_bf16 {vr(d,4)}, {vr(AO+8*(ks%2)+4*mu,4)}, {vr(BO+8*(ks%2)+4*j,4)}, " + ("0" if ks == 0 else vr(d, 4)))
    vO, vT = 8, 9
    a(f"v_and_b32 v{t}, 15, v0"); a(f"s_lshr_b32 s{T0}, s{S_W}, 1"); a(f"s_lshl_b32 s{T0}, s{T0}, 5"); a(f"s_lshl_b32 s{T0+1}, s{S_TG}, 6"); a(f"s_add_u32 s{T0}, s{T0}, s{T0+1}")
    a(f"v_add_u32 v{vT}, s{T0}, v{t}")
    a(f"v_mul_u32_u24 v{vO}, 896, v{vT}"); a(f"v_bfe_u32 v{t}, v0, 4, 2"); a(f"v_lshl_add_u32 v{vO}, v{t}, 4, v{vO}")
    a(f"s_and_b32 s{T0}, s{S_W}, 1"); a(f"s_lshl_b32 s{T0}, s{T0}, 6"); a(f"s_lshl_b32 s{T0+1}, s{S_DG}, 7"); a(f"s_add_u32 s{T0}, s{T0}, s{T0+1}"); a(f"v_add_u32 v{vO}, s{T0}, v{vO}")
    a(f"v_lshlrev_b32 v{vT}, 1, v{vT}")
    add64(a, T1, S_WS, ws.HB)
    HR, B2 = 12, 20
    for j in range(2):
        if j == 1: a(f"v_add_u32 v{vO}, {16*896}, v{vO}")
        a(f"global_load_dwordx4 {vr(HR+4*j,4)}, v{vO}, s[{T1}:{T1+1}]"); a(f"global_load_ushort v{B2+j}, v{vT}, s[{S_B2}:{S_B2+1}] offset:{32*j}")
    a(f"v_subrev_u32 v{vO}, {16*896}, v{vO}")
    a("s_waitcnt vmcnt(0)")
    for j in range(2):
        a(f"v_lshlrev_b32 v{B2+j}, 16, v{B2+j}")
        PK = 24
        for mu in range(2):
            d = ACC + (j * 2 + mu) * 4
            for e in range(2):
                hreg = HR + 4 * j + 2 * mu + e
                a(f"v_lshlrev_b32 v{t}, 16, v{hreg}"); a(f"v_and_b32 v{t2}, 0xffff0000, v{hreg}")
                a(f"v_add_f32 v{d+2*e}, v{d+2*e}, v{B2+j}"); a(f"v_add_f32 v{d+2*e+1}, v{d+2*e+1}, v{B2+j}")
                a(f"v_add_f32 v{d+2*e}, v{d+2*e}, v{t}"); a(f"v_add_f32 v{d+2*e+1}, v{d+2*e+1}, v{t2}")
                a(f"v_cvt_pk_bf16_f32 v{PK+2*mu+e}, v{d+2*e}, v{d+2*e+1}")
        if j == 1: a(f"v_add_u32 v{vO}, {16*896}, v{vO}")
        a(f"global_store_dwordx4 v{vO}, {vr(PK,4)}, s[{S_OUT}:{S_OUT+1}]"); a("s_nop 1")
    if rt:
        a("s_waitcnt vmcnt(0)"); a("s_mov_b32 s95, s2"); rt_end(a, S_WS, ws.PROF + 24576, 95, tmp=88)
    a.label(E)
    a("s_endpgm")
    return a.text()
```

```python
from asmlib import *
from layout import *
def add64(a, dst, src, imm):
    a(f"s_add_u32 s{dst}, s{src}, {imm}"); a(f"s_addc_u32 s{dst+1}, s{src+1}, 0")
def add64s(a, dst, src, sreg):
    a(f"s_add_u32 s{dst}, s{src}, s{sreg}"); a(f"s_addc_u32 s{dst+1}, s{src+1}, 0")
DPPM = "row_mask:0xf bank_mask:0xf"
S_WS, S_W, S_B = 4, 8, 9
S_X, S_M0, S_WQ, S_WK, S_WV, S_WO = 10, 12, 14, 16, 18, 20
T0, T1, T2, T3 = 24, 26, 28, 30
def mfma(d, A, B, C): return f"v_mfma_f32_16x16x32_bf16 {vr(d,4)}, {vr(A,4)}, {vr(B,4)}, {C}"
def gen_fold(a):
    S_TY, S_H, S_NG, S_AB, S_OUT, S_SC, S_IT = 32, 33, 34, 36, 38, 40, 41
    a(f"s_cmp_ge_u32 s{S_B}, 112"); a(f"s_cselect_b32 s{S_TY}, 1, 0"); a(f"s_mul_i32 s{T0}, s{S_TY}, 112"); a(f"s_sub_u32 s{T0}, s{S_B}, s{T0}")
    a(f"s_mul_i32 s{S_H}, s{T0}, 9363"); a(f"s_lshr_b32 s{S_H}, s{S_H}, 16")
    a(f"s_mul_i32 s{T0+1}, s{S_H}, 7"); a(f"s_sub_u32 s{S_NG}, s{T0}, s{T0+1}")
    BOP, AOP, DD = 0, 128, 256 + 0
    BOP = 8
    A0, A1 = 256, 256 + 64
    DD = 136
    PK = 168
    vL16, vA, vB, vt, vt2, vt3 = 172, 173, 174, 175, 176, 177
    a(f"v_and_b32 v{vt}, 63, v0"); a(f"v_lshlrev_b32 v{vL16}, 4, v{vt}")
    a(f"v_and_b32 v{vt2}, 15, v0"); a(f"v_bfe_u32 v{vt3}, v0, 4, 2")
    a(f"v_lshrrev_b32 v{vA}, 2, v{vt2}"); a(f"v_lshlrev_b32 v{vA}, 3, v{vA}"); a(f"v_and_b32 v{vt}, 3, v{vt2}"); a(f"v_add_u32 v{vA}, v{vA}, v{vt}")
    a(f"v_lshlrev_b32 v{vA}, 13, v{vA}"); a(f"v_lshl_add_u32 v{vA}, v{vt3}, 4, v{vA}")
    a(f"s_cmp_eq_u32 s{S_TY}, 0"); a(f"s_cselect_b32 s{S_AB}, s{S_WQ}, s{S_WV}"); a(f"s_cselect_b32 s{S_AB+1}, s{S_WQ+1}, s{S_WV+1}")
    a(f"s_lshl_b32 s{T0}, s{S_H}, 9"); add64s(a, S_AB, S_AB, T0)
    a(f"s_cselect_b32 s{T1}, 0, {ws.WB}") if False else None
    a(f"s_cmp_eq_u32 s{S_TY}, 0"); a(f"s_mov_b32 s{T1}, {ws.WB}"); a(f"s_cselect_b32 s{T1}, 0, s{T1}"); a(f"s_mov_b32 s{S_SC}, 0x3db8aa3b"); a(f"s_cselect_b32 s{S_SC}, s{S_SC}, 1.0")
    a(f"s_mul_i32 s{T0}, s{S_H}, {HEADW}"); a(f"s_add_u32 s{T1}, s{T1}, s{T0}"); a(f"s_mul_i32 s{T0}, s{S_NG}, {4*TILE}"); a(f"s_add_u32 s{T1}, s{T1}, s{T0}")
    add64s(a, S_OUT, S_WS, T1)
    def a_loads(buf, sblk):
        for mu in range(2):
            for k in range(8):
                if mu == 1 and k == 0: add64(a, T3, sblk, 32768)
                sb = sblk if mu == 0 else T3
                a(f"global_load_dwordx4 {vr(buf+(mu*8+k)*4,4)}, v{vA}, s[{sb}:{sb+1}] offset:{k*64}")
    S_BLK = 42
    a(f"s_lshl_b32 s{T0}, s{S_W}, 18"); add64s(a, S_BLK, S_AB, T0)
    a_loads(A0, S_BLK)
    lB, lj = a.newlabel("foldB"), a.newlabel("foldj")
    a(f"s_cmp_eq_u32 s{S_TY}, 1"); a(f"s_cbranch_scc1 {lB}")
    a(f"v_lshlrev_b32 v{vB}, 13, v{vt2}"); a(f"v_lshl_add_u32 v{vB}, v{vt3}, 4, v{vB}")
    a(f"s_lshl_b32 s{T0}, s{S_NG}, 19"); a(f"s_lshl_b32 s{T0+1}, s{S_H}, 9"); a(f"s_add_u32 s{T0}, s{T0}, s{T0+1}")
    add64s(a, T1, S_WK, T0)
    for i in range(4):
        for k in range(8): a(f"global_load_dwordx4 {vr(BOP+(i*8+k)*4,4)}, v{vB}, s[{T1}:{T1+1}] offset:{k*64}")
        if i < 3: add64(a, T1, T1, 16 * 8192)
    a(f"s_branch {lj}")
    a.label(lB)
    a(f"s_mul_i32 s{T0}, s{S_H}, 229376"); a(f"s_lshl_b32 s{T0+1}, s{S_NG}, 7"); a(f"s_add_u32 s{T0}, s{T0}, s{T0+1}"); add64s(a, T1, S_WO, T0)
    a(f"v_lshrrev_b32 v{vt}, 3, v0"); a(f"v_and_b32 v{vB}, 7, v0")
    a(f"v_mul_u32_u24 v{PK}, 896, v{vt}"); a(f"v_lshl_add_u32 v{PK}, v{vB}, 4, v{PK}")
    a(f"v_mul_u32_u24 v{PK+1}, 144, v{vt}"); a(f"v_lshl_add_u32 v{PK+1}, v{vB}, 4, v{PK+1}")
    for j in range(8):
        a(f"global_load_dwordx4 {vr(BOP+4*j,4)}, v{PK}, s[{T1}:{T1+1}]"); add64(a, T1, T1, 32 * 896)
    a("s_waitcnt vmcnt(0)")
    for j in range(8): a(f"ds_write_b128 v{PK+1}, {vr(BOP+4*j,4)} offset:{j*32*144}")
    a("s_waitcnt lgkmcnt(0)"); a("s_barrier")
    a(f"v_bfe_u32 v{vt}, v0, 2, 2"); a(f"v_lshl_add_u32 v{vt}, v{vt3}, 3, v{vt}"); a(f"v_mul_u32_u24 v{vB}, 144, v{vt}"); a(f"v_and_b32 v{vt}, 3, v0"); a(f"v_lshl_add_u32 v{vB}, v{vt}, 3, v{vB}")
    for i in range(4):
        for k in range(8):
            for hf in range(2): a(f"ds_read_b64_tr_b16 {vr(BOP+(i*8+k)*4+2*hf,2)}, v{vB} offset:{(32*k+4*hf)*144+i*32}")
        a("s_waitcnt lgkmcnt(0)")
    a.label(lj)
    a(f"s_mov_b32 s{S_IT}, s{S_W}")
    loop, fin = a.newlabel("fl"), a.newlabel("flend")
    def block(cur, nxt):
        ln = a.newlabel("nonext")
        a(f"s_add_u32 s{T0}, s{S_IT}, 4"); a(f"s_cmp_ge_u32 s{T0}, 14"); a(f"s_cbranch_scc1 {ln}")
        add64(a, S_BLK, S_BLK, 4 << 18)
        a_loads(nxt, S_BLK)
        a("s_waitcnt vmcnt(16)")
        lw = a.newlabel("w")
        a(f"s_branch {lw}")
        a.label(ln); a("s_waitcnt vmcnt(0)"); a.label(lw)
        for k in range(8):
            for mu in range(2):
                for i in range(4):
                    d = DD + (mu * 4 + i) * 4
                    a(mfma(d, cur + (mu * 8 + k) * 4, BOP + (i * 8 + k) * 4, "0" if k == 0 else vr(d, 4)))
        a("s_nop 7")
        a(f"s_lshl_b32 s{T0}, s{S_IT}, 10"); add64s(a, T1, S_OUT, T0)
        for i in range(4):
            d0, d1 = DD + i * 4, DD + (4 + i) * 4
            for j in range(4): a(f"v_mul_f32 v{d0+j}, s{S_SC}, v{d0+j}"); a(f"v_mul_f32 v{d1+j}, s{S_SC}, v{d1+j}")
            a(f"v_cvt_pk_bf16_f32 v{PK}, v{d0}, v{d0+1}"); a(f"v_cvt_pk_bf16_f32 v{PK+1}, v{d0+2}, v{d0+3}")
            a(f"v_cvt_pk_bf16_f32 v{PK+2}, v{d1}, v{d1+1}"); a(f"v_cvt_pk_bf16_f32 v{PK+3}, v{d1+2}, v{d1+3}")
            a(f"global_store_dwordx4 v{vL16}, {vr(PK,4)}, s[{T1}:{T1+1}]")
            if i < 3: add64(a, T1, T1, TILE)
            a("s_nop 1")
        a(f"s_add_u32 s{S_IT}, s{S_IT}, 4"); a(f"s_cmp_ge_u32 s{S_IT}, 14"); a(f"s_cbranch_scc1 {fin}")
    a.label(loop)
    block(A0, A1); block(A1, A0)
    a(f"s_branch {loop}")
    a.label(fin)
def gen_ln(a):
    XL = 0; RS = 912
    S_SEG, S_R = 32, 34
    vt, vt2, vt3, vO, vLd = 1, 2, 3, 4, 5
    X = 8
    Fv = 32
    a(f"s_sub_u32 s{S_SEG}, s{S_B}, 224"); a(f"s_lshl_b32 s{S_SEG}, s{S_SEG}, 1")
    a(f"v_and_b32 v{vt}, 15, v0"); a(f"v_bfe_u32 v{vt2}, v0, 4, 2")
    a(f"s_lshl_b32 s{T0}, s{S_W}, 4"); a(f"v_add_u32 v{vt3}, s{T0}, v{vt2}")
    a(f"v_mul_u32_u24 v{vO}, 896, v{vt3}"); a(f"v_lshl_add_u32 v{vO}, v{vt}, 4, v{vO}")
    a(f"v_mul_u32_u24 v{vLd}, {RS}, v{vt3}"); a(f"v_lshl_add_u32 v{vLd}, v{vt}, 4, v{vLd}")
    a(f"s_mul_i32 s{T0}, s{S_SEG}, {32*896}"); add64s(a, S_R, S_X, T0)
    a(f"v_cmp_gt_u32 s[36:37], 8, v{vt}")
    for it in range(4):
        for k in range(3): a(f"global_load_dwordx4 {vr(X+4*k,4)}, v{vO}, s[{S_R}:{S_R+1}] offset:{k*256}")
        for k in range(4): a(f"v_mov_b32 v{X+12+k}, 0")
        a("s_mov_b64 exec, s[36:37]"); a(f"global_load_dwordx4 {vr(X+12,4)}, v{vO}, s[{S_R}:{S_R+1}] offset:768"); a("s_mov_b64 exec, -1")
        a("s_waitcnt vmcnt(0)")
        for d in range(16):
            a(f"v_lshlrev_b32 v{Fv+2*d}, 16, v{X+d}"); a(f"v_and_b32 v{Fv+2*d+1}, 0xffff0000, v{X+d}")
        sm = 6
        a(f"v_add_f32 v{sm}, v{Fv}, v{Fv+1}")
        for d in range(2, 32): a(f"v_add_f32 v{sm}, v{sm}, v{Fv+d}")
        for r in (8, 4, 2, 1): a("s_nop 1"); a(f"v_add_f32_dpp v{sm}, v{sm}, v{sm} row_ror:{r} {DPPM}")
        a(f"v_mul_f32 v{sm}, 0x3b124925, v{sm}")
        for d in range(32): a(f"v_sub_f32 v{Fv+d}, v{Fv+d}, v{sm}")
        a("s_mov_b64 exec, s[36:37]"); a("s_not_b64 exec, exec")
        for d in range(24, 32): a(f"v_mov_b32 v{Fv+d}, 0")
        a("s_mov_b64 exec, -1")
        vs = 7
        a(f"v_mul_f32 v{vs}, v{Fv}, v{Fv}")
        for d in range(1, 32): a(f"v_fmac_f32 v{vs}, v{Fv+d}, v{Fv+d}")
        for r in (8, 4, 2, 1): a("s_nop 1"); a(f"v_add_f32_dpp v{vs}, v{vs}, v{vs} row_ror:{r} {DPPM}")
        a(f"v_mov_b32 v{sm}, 0x3727c5ac")
        a(f"v_fmac_f32 v{sm}, 0x3b124925, v{vs}")
        a(f"v_rsq_f32 v{sm}, v{sm}"); a("s_nop 0")
        for d in range(32): a(f"v_mul_f32 v{Fv+d}, v{Fv+d}, v{sm}")
        for d in range(16): a(f"v_cvt_pk_bf16_f32 v{X+d}, v{Fv+2*d}, v{Fv+2*d+1}")
        for k in range(3): a(f"ds_write_b128 v{vLd}, {vr(X+4*k,4)} offset:{it*4*RS+k*256}")
        a("s_mov_b64 exec, s[36:37]"); a(f"ds_write_b128 v{vLd}, {vr(X+12,4)} offset:{it*4*RS+768}"); a("s_mov_b64 exec, -1")
        if it < 3: a(f"v_add_u32 v{vO}, {4*896}, v{vO}")
    a("s_waitcnt lgkmcnt(0)"); a("s_barrier")
    vL16, vn, vg, vA = 64, 65, 66, 67
    a(f"v_and_b32 v{vt}, 63, v0"); a(f"v_lshlrev_b32 v{vL16}, 4, v{vt}"); a(f"v_and_b32 v{vn}, 15, v0"); a(f"v_bfe_u32 v{vg}, v0, 4, 2")
    for sg in range(2):
        rb = sg * 32 * RS
        a(f"v_mul_u32_u24 v{vA}, {RS}, v{vn}"); a(f"v_lshl_add_u32 v{vA}, v{vg}, 4, v{vA}")
        a(f"s_add_u32 s{T0}, s{S_SEG}, {sg}"); a(f"s_mul_i32 s{T0}, s{T0}, {2*14336}"); add64(a, T1, S_WS, ws.XNA); add64s(a, T1, T1, T0)
        for j in range(7):
            a(f"s_add_u32 s{T0}, s{S_W}, {4*j}"); a(f"s_cmp_ge_u32 s{T0}, 14"); a(f"s_cselect_b32 s{T2}, {16*RS-14*64}, 0"); a(f"s_lshl_b32 s{T2+1}, s{T0}, 6"); a(f"s_add_u32 s{T2}, s{T2}, s{T2+1}")
            a(f"s_add_u32 s{T2}, s{T2}, {rb}"); a(f"v_add_u32 v{vt}, s{T2}, v{vA}"); a(f"ds_read_b128 {vr(X,4)}, v{vt}")
            a(f"s_lshl_b32 s{T0}, s{T0}, 10"); add64s(a, T3, T1, T0); a("s_waitcnt lgkmcnt(0)")
            a(f"global_store_dwordx4 v{vL16}, {vr(X,4)}, s[{T3}:{T3+1}]"); a("s_nop 1")
        a(f"s_mul_i32 s{T0}, s{S_W}, 224"); a(f"s_add_u32 s{T0}, s{T0}, {rb}"); a(f"v_add_u32 v{vA}, s{T0}, v{vA}")
        a(f"s_add_u32 s{T0}, s{S_SEG}, {sg}"); a(f"s_lshl_b32 s{T0}, s{T0}, 15"); a(f"s_lshl_b32 s{T0+1}, s{S_W}, 13"); a(f"s_add_u32 s{T0}, s{T0}, s{T0+1}")
        add64(a, T1, S_WS, ws.XNF); add64s(a, T1, T1, T0)
        a(f"v_cmp_gt_u32 s[38:39], 2, v{vg}")
        for k2 in range(4):
            for q in range(2):
                a(f"ds_read_b128 {vr(X,4)}, v{vA} offset:{q*16*RS+k2*64}"); a("s_waitcnt lgkmcnt(0)")
                a(f"v_mov_b32 v{X+4}, v{X}"); a(f"v_mov_b32 v{X+5}, v{X+2}"); a(f"v_mov_b32 v{X+6}, v{X+1}"); a(f"v_mov_b32 v{X+7}, v{X+3}")
                if k2 == 3:
                    for e in range(4): a(f"v_cndmask_b32 v{X+4+e}, 0, v{X+4+e}, s[38:39]")
                a(f"global_store_dwordx4 v{vL16}, {vr(X+4,4)}, s[{T1}:{T1+1}] offset:{(k2*2+q)*1024 - 4096 if (k2*2+q) >= 4 else (k2*2+q)*1024}") if False else None
                jj = k2 * 2 + q
                if jj == 4: add64(a, T1, T1, 4096)
                a(f"global_store_dwordx4 v{vL16}, {vr(X+4,4)}, s[{T1}:{T1+1}] offset:{(jj%4)*1024}"); a("s_nop 1")
        a(f"v_and_b32 v{vt}, 7, v0"); a(f"s_lshl_b32 s{T0}, s{S_W}, 3"); a(f"v_add_u32 v{vt}, s{T0}, v{vt}"); a(f"v_mul_u32_u24 v{vA}, {RS}, v{vt}")
        a(f"v_lshl_add_u32 v{vA}, v{vg}, 5, v{vA}"); a(f"v_bfe_u32 v{vt}, v0, 3, 1"); a(f"v_lshl_add_u32 v{vA}, v{vt}, 2, v{vA}"); a(f"v_add_u32 v{vA}, {rb}, v{vA}")
        a(f"s_add_u32 s{T0}, s{S_SEG}, {sg}"); a(f"s_lshl_b32 s{T0}, s{T0}, 2"); a(f"s_add_u32 s{T0}, s{T0}, s{S_W}"); a(f"s_mul_i32 s{T0}, s{T0}, {MEMSZ}")
        add64(a, T1, S_WS, ws.XQ); add64s(a, T1, T1, T0)
        for k in range(7):
            a(f"v_add_u32 v{vt}, {128*k}, v{vA}")
            a(f"ds_read2_b32 {vr(X,2)}, v{vt} offset0:0 offset1:2"); a(f"ds_read2_b32 {vr(X+2,2)}, v{vt} offset0:4 offset1:6"); a("s_waitcnt lgkmcnt(0)")
            if k == 4: add64(a, T1, T1, 4096)
            a(f"global_store_dwordx4 v{vL16}, {vr(X,4)}, s[{T1}:{T1+1}] offset:{(k%4)*1024}"); a("s_nop 1")
    lm = a.newlabel("nomem0")
    a(f"s_cmp_lg_u32 s{S_B}, 255"); a(f"s_cbranch_scc1 {lm}"); a(f"s_cmp_lg_u32 s{S_W}, 0"); a(f"s_cbranch_scc1 {lm}")
    a(f"v_and_b32 v{vt}, 7, v0"); a(f"v_mul_u32_u24 v{vA}, 896, v{vt}"); a(f"v_lshl_add_u32 v{vA}, v{vg}, 5, v{vA}"); a(f"v_bfe_u32 v{vt}, v0, 3, 1"); a(f"v_lshl_add_u32 v{vA}, v{vt}, 2, v{vA}")
    add64(a, T1, S_WS, ws.MEMG)
    for k in range(7):
        for t in range(4): a(f"global_load_dword v{X+t}, v{vA}, s[{S_M0}:{S_M0+1}] offset:{128*k+8*t}")
        a("s_waitcnt vmcnt(0)")
        for t in range(4): a(f"v_min_u32 v{X+t}, -2, v{X+t}")
        if k == 4: add64(a, T1, T1, 4096)
        a(f"global_store_dwordx4 v{vL16}, {vr(X,4)}, s[{T1}:{T1+1}] offset:{(k%4)*1024}"); a("s_nop 1")
    a.label(lm)
def gen_k1(name, rt=False):
    a = Asm()
    a.raw(kernel_begin(name))
    if rt: rt_begin(a)
    a(f"s_cmp_ge_u32 s2, 256"); a(f"s_cbranch_scc1 L_{name}_end")
    a(f"s_mov_b32 s{S_B}, s2")
    a(f"s_load_dwordx2 s[{S_WS}:{S_WS+1}], s[0:1], 112")
    a(f"s_load_dwordx4 s[{S_X}:{S_X+3}], s[0:1], 0") if False else None
    a(f"s_load_dwordx2 s[{S_X}:{S_X+1}], s[0:1], 0"); a(f"s_load_dwordx2 s[{S_M0}:{S_M0+1}], s[0:1], 8")
    a(f"s_load_dwordx2 s[{S_WQ}:{S_WQ+1}], s[0:1], 16"); a(f"s_load_dwordx2 s[{S_WK}:{S_WK+1}], s[0:1], 24")
    a(f"s_load_dwordx2 s[{S_WV}:{S_WV+1}], s[0:1], 32"); a(f"s_load_dwordx2 s[{S_WO}:{S_WO+1}], s[0:1], 40")
    a("v_lshrrev_b32 v1, 6, v0"); a("s_nop 0"); a(f"v_readfirstlane_b32 s{S_W}, v1")
    a("s_waitcnt lgkmcnt(0)")
    N16 = (ws.SENT1 - ws.SENT0 - MEMSZ) // 16
    a(f"s_lshl_b32 s{T0}, s{S_B}, 8"); a(f"v_add_u32 v2, s{T0}, v0")
    for k in range(4): a(f"v_mov_b32 v{4+k}, -1")
    add64(a, T1, S_WS, ws.SENT0 + MEMSZ)
    for k in range((N16 + 65535) // 65536):
        a(f"v_cmp_gt_u32 vcc, {N16 - k*65536}, v2") if N16 - k * 65536 < 65536 else None
        a(f"v_lshlrev_b32 v3, 4, v2")
        if N16 - k * 65536 < 65536:
            lz = a.newlabel("nz")
            a("s_and_saveexec_b64 s[22:23], vcc"); a(f"s_cbranch_execz {lz}")
            a(f"global_store_dwordx4 v3, v[4:7], s[{T1}:{T1+1}]")
            a.label(lz); a("s_mov_b64 exec, s[22:23]")
        else:
            a(f"global_store_dwordx4 v3, v[4:7], s[{T1}:{T1+1}]")
        add64(a, T1, T1, 65536 * 16)
    a(f"s_cmp_ge_u32 s{S_B}, 224"); a(f"s_cbranch_scc1 L_{name}_ln")
    gen_fold(a)
    a(f"s_branch L_{name}_fin")
    a.label(f"L_{name}_ln")
    gen_ln(a)
    a.label(f"L_{name}_fin")
    if rt:
        a("s_waitcnt vmcnt(0)"); rt_end(a, S_WS, ws.PROF, S_B)
    a.label(f"L_{name}_end")
    a("s_endpgm")
    return a.text()
```

```python
import os
from asmlib import *
from layout import *
import chain6 as C
from chain6 import S_WS, S_DBG, S_W, S_ROLE, S_T0, S_T1, S_T2, S_GAM, S_CNT, add64, add64s, POLL_LIMIT
import vxg, g1
S_XCC, S_WID, S_XPTR = 68, 69, 70
def wait_vx(a, abort):
    lp, lg = a.newlabel("vxw"), a.newlabel("vxg")
    a(f"s_mov_b32 s{S_CNT}, 0"); a("v_mov_b32 v1, 64")
    a.label(lp)
    a(f"global_load_dword v2, v1, s[{S_DBG}:{S_DBG+1}] sc1"); a("s_waitcnt vmcnt(0)")
    a("v_cmp_gt_u32 vcc, 224, v2"); a(f"s_cbranch_vccz {lg}")
    a(f"s_add_u32 s{S_CNT}, s{S_CNT}, 1"); a(f"s_cmp_gt_u32 s{S_CNT}, {POLL_LIMIT}"); a(f"s_cbranch_scc1 {abort}"); a("s_sleep 8"); a(f"s_branch {lp}")
    a.label(lg)
def gen_k2(name, prof_on=None, rt=False):
    a = Asm(); prof = C.Prof(prof_on); noprof = C.Prof(None)
    a.raw(kernel_begin(name))
    E = f"L_{name}_end"
    a("s_cmp_ge_u32 s2, 256"); a(f"s_cbranch_scc1 {E}")
    if rt: rt_begin(a)
    a(f"s_load_dwordx2 s[{S_WS}:{S_WS+1}], s[0:1], 112"); a(f"s_load_dwordx2 s[{S_DBG}:{S_DBG+1}], s[0:1], 104"); a(f"s_load_dwordx2 s[{S_XPTR}:{S_XPTR+1}], s[0:1], 0")
    a(f"s_getreg_b32 s{S_XCC}, hwreg(HW_REG_XCC_ID)"); a(f"s_and_b32 s{S_XCC}, s{S_XCC}, 7")
    a("v_lshrrev_b32 v1, 6, v0"); a("s_nop 0"); a(f"v_readfirstlane_b32 s{S_W}, v1")
    a("s_waitcnt lgkmcnt(0)")
    a(f"s_cmp_lg_u32 s{S_W}, 0"); a("s_cbranch_scc1 L_rank_wait")
    a(f"s_lshl_b32 s{S_T0}, s{S_XCC}, 2"); a(f"v_mov_b32 v1, s{S_T0}"); a("v_mov_b32 v2, 1")
    a("v_cmp_eq_u32 vcc, 0, v0"); a("s_and_saveexec_b64 s[20:21], vcc")
    a(f"global_atomic_add v3, v1, v2, s[{S_DBG}:{S_DBG+1}] sc0 sc1"); a("s_waitcnt vmcnt(0)")
    a("v_mov_b32 v1, 0"); a("ds_write_b32 v1, v3"); a("s_waitcnt lgkmcnt(0)")
    a("s_mov_b64 exec, s[20:21]")
    a.label("L_rank_wait")
    a("s_barrier")
    a("v_mov_b32 v1, 0"); a("ds_read_b32 v3, v1"); a("s_waitcnt lgkmcnt(0)"); a("s_nop 0")
    a(f"v_readfirstlane_b32 s{S_ROLE}, v3"); a("s_nop 3")
    a("s_barrier")
    a(f"s_cmp_ge_u32 s{S_ROLE}, 32"); a(f"s_cbranch_scc1 {E}")
    a(f"s_cmp_eq_u32 s{S_XCC}, 0"); a("s_cbranch_scc1 L_chain")
    a(f"s_sub_u32 s{S_WID}, s{S_XCC}, 1"); a(f"s_lshl_b32 s{S_WID}, s{S_WID}, 5"); a(f"s_add_u32 s{S_WID}, s{S_WID}, s{S_ROLE}")
    vxg.gen_vx(a, S_WS, S_W, S_WID, 72)
    a("s_barrier")
    l = a.newlabel("sig")
    a("v_cmp_eq_u32 vcc, 0, v0"); a("s_and_saveexec_b64 s[20:21], vcc"); a(f"s_cbranch_execz {l}")
    a("v_mov_b32 v1, 64"); a("v_mov_b32 v2, 1"); a(f"global_atomic_add v1, v2, s[{S_DBG}:{S_DBG+1}] sc1"); a("s_waitcnt vmcnt(0)")
    a.label(l); a("s_mov_b64 exec, s[20:21]")
    a(f"s_cmp_ge_u32 s{S_XCC}, 5"); a("s_cbranch_scc1 L_free")
    a(f"s_sub_u32 s{S_GAM}, s{S_XCC}, 1")
    a(f"s_cmp_ge_u32 s{S_ROLE}, 31"); a("s_cbranch_scc1 L_done")
    a(f"s_cmp_eq_u32 s{S_ROLE}, 30"); a("s_cbranch_scc1 L_qL")
    a(f"s_cmp_ge_u32 s{S_ROLE}, 16"); a("s_cbranch_scc1 L_qB")
    C.gen_A(a, noprof, "L_abort", "L_done", q=True)
    a.label("L_qB"); C.gen_B(a, noprof, "L_abort", "L_done", q=True, pre=lambda: wait_vx(a, "L_abort"))
    a.label("L_qL"); C.gen_L(a, "L_abort", "L_done", S_XPTR)
    a.label("L_free")
    a(f"s_sub_u32 s{S_WID}, s{S_XCC}, 5"); a(f"s_lshl_b32 s{S_WID}, s{S_WID}, 5"); a(f"s_add_u32 s{S_WID}, s{S_WID}, s{S_ROLE}")
    a(f"s_cmp_ge_u32 s{S_WID}, 56"); a("s_cbranch_scc1 L_done")
    g1.gen_g1(a, S_WS, S_W, S_WID, 0, "L_abort", 72, POLL_LIMIT)
    a("s_branch L_done")
    a.label("L_chain")
    a(f"s_cmp_ge_u32 s{S_ROLE}, 31"); a("s_cbranch_scc1 L_done")
    a(f"s_cmp_eq_u32 s{S_ROLE}, 30"); a("s_cbranch_scc1 L_roleF")
    a(f"s_cmp_ge_u32 s{S_ROLE}, 16"); a("s_cbranch_scc1 L_roleB")
    C.gen_A(a, prof, "L_abort", "L_pdone")
    a.label("L_roleB"); C.gen_B(a, prof, "L_abort", "L_pdone", pre=lambda: wait_vx(a, "L_abort"))
    a.label("L_roleF"); C.gen_F(a, "L_abort", "L_done")
    a.label("L_abort")
    a("v_mov_b32 v1, 128"); a("v_mov_b32 v2, 1"); a(f"global_atomic_add v1, v2, s[{S_DBG}:{S_DBG+1}] sc1"); a("s_waitcnt vmcnt(0)")
    a("s_branch L_done")
    a.label("L_pdone")
    prof.dump(a)
    a.label("L_done")
    if rt: rt_end(a, S_WS, ws.PROF + 8192, 2) if False else rt_end_b(a)
    a.label(E)
    a("s_endpgm")
    return a.text()
def rt_end_b(a):
    a(f"s_lshl_b32 s95, s{S_XCC}, 5"); a(f"s_add_u32 s95, s95, s{S_ROLE}")
    rt_end(a, S_WS, ws.PROF + 16384, 95, tmp=88)
```

```python
S, D, H, DH, M, SEG, F = 2048, 448, 16, 256, 8, 32, 1792
NSEG = 64
class WS: pass
ws = WS()
_off = 0
def alloc(name, n, align=4096):
    global _off
    _off = (_off + align - 1) // align * align
    setattr(ws, name, _off); setattr(ws, name + "_size", n)
    _off += n
TILE = 14336
HEADW = 28 * TILE
alloc("WA", 16 * HEADW)
alloc("WB", 16 * HEADW)
alloc("VXT", 64 * 16 * 28 * 1024)
alloc("XNF", 64 * 4 * 4 * 2 * 1024)
alloc("XNA", 128 * 14 * 1024)
MEMSZ = 7168
alloc("XQ", 64 * 4 * MEMSZ)
alloc("MEMG", 64 * MEMSZ)
alloc("MEMX", 64 * MEMSZ)
alloc("PX", 64 * 8192)
alloc("PM", 64 * 2048)
alloc("QPX", 4 * 64 * 8192)
alloc("QPM", 4 * 64 * 2048)
alloc("QO", 4 * 64 * MEMSZ)
alloc("HNF", 64 * 28 * 1024)
ws.SENT0 = ws.MEMG; ws.SENT1 = _off
alloc("HB", 2048 * 448 * 2)
alloc("GF", 28 * 56 * 1024)
alloc("CNT", 4096)
alloc("PROF", 1 << 16)
ws.total = _off
if __name__ == "__main__":
    for k, v in vars(ws).items(): print(k, v, hex(v))
```

```python
from asmlib import *
from layout import *
def add64(a, dst, src, imm):
    a(f"s_add_u32 s{dst}, s{src}, {imm}"); a(f"s_addc_u32 s{dst+1}, s{src+1}, 0")
def add64s(a, dst, src, sreg):
    a(f"s_add_u32 s{dst}, s{src}, s{sreg}"); a(f"s_addc_u32 s{dst+1}, s{src+1}, 0")
import os
STFLAG = os.environ.get('VXST', 'sc1')
def gen_vx(a, S_WS, S_W, S_WID, sfree, lds_base=0):
    T0, T1, SX, SO, SM0, SIT, SG, SCB = sfree, sfree + 2, sfree + 4, sfree + 6, sfree + 8, sfree + 9, sfree + 10, sfree + 11
    vL16, vA = 2, 3
    AO, DD, PK = 8, 40, 104
    a(f"s_mul_i32 s{SG}, s{S_WID}, 2341"); a(f"s_lshr_b32 s{SG}, s{SG}, 16")
    a(f"s_mul_i32 s{T0}, s{SG}, 28"); a(f"s_sub_u32 s{SCB}, s{S_WID}, s{T0}")
    a(f"v_and_b32 v1, 63, v0"); a(f"v_lshlrev_b32 v{vL16}, 4, v1")
    a(f"v_add_u32 v{vA}, {lds_base}, v{vL16}")
    a(f"s_mul_i32 s{T0}, s{SG}, {8*28672}"); a(f"s_mul_i32 s{T0+1}, s{S_W}, 7168"); a(f"s_add_u32 s{T0}, s{T0}, s{T0+1}"); a(f"s_add_u32 s{T0}, s{T0}, 4096")
    add64(a, SX, S_WS, ws.XNA); add64s(a, SX, SX, T0)
    a(f"s_add_u32 s{SM0}, s{T0+1}, {lds_base+4096}")
    def dma(buf):
        a(f"s_add_u32 s{T0}, s{SM0}, {buf*28672}"); a(f"s_mov_b32 m0, s{T0}"); a("s_nop 0")
        for j in range(7): a(f"global_load_lds_dwordx4 v{vL16}, s[{SX}:{SX+1}] offset:{j*1024-4096}")
        add64(a, SX, SX, 28672)
    dma(0)
    a(f"s_lshl_b32 s{T0}, s{SCB}, 4"); a(f"s_lshl_b32 s{T0+1}, s{S_W}, 2"); a(f"s_add_u32 s{T0}, s{T0}, s{T0+1}")
    a(f"s_lshl_b32 s{SO}, s{T0}, 10")
    a(f"s_mul_i32 s{T0}, s{T0}, {TILE}"); add64(a, T1, S_WS, ws.WB); add64s(a, T1, T1, T0)
    for i in range(4):
        for k in range(14):
            a(f"global_load_dwordx4 {vr(256+(i*14+k)*4,4)}, v{vL16}, s[{T1}:{T1+1}] offset:{(k%4)*1024}")
            if k % 4 == 3: add64(a, T1, T1, 4096)
        add64(a, T1, T1, 2048)
    a(f"s_mul_i32 s{T0}, s{SG}, {8*458752}"); a(f"s_add_u32 s{T0}, s{T0}, s{SO}"); add64(a, SO, S_WS, ws.VXT); add64s(a, SO, SO, T0)
    a("s_waitcnt vmcnt(0)"); a("s_barrier")
    if os.environ.get("VXPROF"):
        a("s_memrealtime s[92:93]"); a("s_memtime s[94:95]"); a("s_waitcnt lgkmcnt(0)")
    def epi_ops(ds):
        ops = []
        for i in range(4):
            d0, d1 = DD + 32 * ds + i * 4, DD + 32 * ds + (4 + i) * 4
            p = PK + 4 * (i % 2)
            ops += [lambda p=p, d0=d0: a(f"v_cvt_pk_bf16_f32 v{p}, v{d0}, v{d0+1}"), lambda p=p, d0=d0: a(f"v_cvt_pk_bf16_f32 v{p+1}, v{d0+2}, v{d0+3}"),
                    lambda p=p, d1=d1: a(f"v_cvt_pk_bf16_f32 v{p+2}, v{d1}, v{d1+1}"), lambda p=p, d1=d1: a(f"v_cvt_pk_bf16_f32 v{p+3}, v{d1+2}, v{d1+3}"),
                    lambda p=p, i=i: a(f"global_store_dwordx4 v{vL16}, {vr(p,4)}, s[{SO}:{SO+1}] offset:{i*1024} {STFLAG}")]
        ops.append(lambda: add64(a, SO, SO, 458752))
        return ops
    def segment(buf, ds, first, last):
        base = buf * 28672
        a.lgkm = []
        def rd(k):
            r = AO + 8 * (k % 4)
            a.ds(f"ds_read_b128 {vr(r,4)}, v{vA} offset:{base+k*1024}", f"A0_{k}"); a.ds(f"ds_read_b128 {vr(r+4,4)}, v{vA} offset:{base+(14+k)*1024}", f"A1_{k}")
        for k in range(3): rd(k)
        if not last: dma(buf ^ 1)
        ops = [] if first else epi_ops(ds ^ 1)
        for k in range(14):
            if k + 3 < 14: rd(k + 3)
            a.wait_ds(f"A1_{k}")
            for q in range(2):
                for i in range(4):
                    d = DD + 32 * ds + (q * 4 + i) * 4
                    a(f"v_mfma_f32_16x16x32_bf16 {vr(d,4)}, {vr(AO+8*(k%4)+4*q,4)}, {vr(256+(i*14+k)*4,4)}, " + ("0" if k == 0 else vr(d, 4)))
                    if k >= 2 and ops and (q * 4 + i) % 2 == 1: ops.pop(0)()
        for o in ops: o()
        if not last: a(f"s_waitcnt vmcnt({0 if first else 4})"); a("s_barrier")
    for s in range(8): segment(s % 2, s % 2, s == 0, s == 7)
    a("s_nop 7")
    for o in epi_ops(1): o()
    if os.environ.get("VXPROF"):
        a("s_memrealtime s[88:89]"); a("s_memtime s[86:87]"); a("s_waitcnt lgkmcnt(0)")
        a("s_sub_u32 s88, s88, s92"); a("s_sub_u32 s86, s86, s94"); a("s_sub_u32 s87, s92, s96")
        a("v_mov_b32 v4, s88"); a("v_mov_b32 v5, s86"); a("v_mov_b32 v6, s87"); a("v_mov_b32 v7, 0")
        a(f"s_lshl_b32 s84, s{S_WID}, 4"); a(f"s_add_u32 s84, s84, {ws.PROF+8192}"); a(f"s_add_u32 s84, s{S_WS}, s84"); a(f"s_addc_u32 s85, s{S_WS+1}, 0")
        a("v_mov_b32 v1, 0"); a("global_store_dwordx4 v1, v[4:7], s[84:85]")
    a("s_waitcnt vmcnt(0)")
def gen_vx_kernel(name, rt=False):
    a = Asm()
    a.raw(kernel_begin(name))
    if rt: rt_begin(a)
    a("s_cmp_ge_u32 s2, 224"); a(f"s_cbranch_scc1 L_{name}_end")
    a("s_load_dwordx2 s[4:5], s[0:1], 112"); a("v_lshrrev_b32 v1, 6, v0"); a("s_nop 0"); a("v_readfirstlane_b32 s8, v1"); a("s_mov_b32 s9, s2"); a("s_waitcnt lgkmcnt(0)")
    gen_vx(a, 4, 8, 9, 12)
    if rt: rt_end(a, 4, ws.PROF + 4096, 9)
    a.label(f"L_{name}_end"); a("s_endpgm")
    return a.text()
```
